```python
import torch

def _softmax(x, axis=-1):
    return torch.softmax(x, dim=axis)
def _gelu(x):
    return torch.nn.functional.gelu(x, approximate="tanh")
def _silu(x):
    return torch.nn.functional.silu(x)
def _sigmoid(x):
    return torch.sigmoid(x)
def _layernorm(x, axis=-1, eps=1e-5):
    m = x.mean(dim=axis, keepdim=True)
    v = x.var(dim=axis, keepdim=True, unbiased=False)
    return (x - m) / torch.sqrt(v + eps)
def _scatter_add(tgt, idx, src, axis=0):
    return tgt.clone().index_add_(axis, idx, src)
def _segment_sum(src, seg, n):
    out = torch.zeros((n,) + src.shape[1:], dtype=src.dtype)
    return out.index_add_(0, seg, src)
def _pad(x, pw):
    flat = tuple(v for pair in reversed(pw) for v in pair)
    return torch.nn.functional.pad(x, flat)

kernel_name = 'recurrent_scan__linear_kernel_hedgehog__glu_gated_swiglu__prompt'

def setup_inputs():

    _w = (lambda a: (lambda t: t.to(torch.bfloat16) if t.is_floating_point() else t)(torch.as_tensor(a)))
    def _A_setup():
        B, S, D, H = 1, 2048, 512, 32
        Dh = D // H
        return {
            "x": _w((lambda *s: torch.randn(*s, dtype=torch.bfloat16) * 0.05)(B, S, D)),
            "wqkv": _w((lambda *s: torch.randn(*s, dtype=torch.bfloat16) * 0.8)(D, 3 * D)),
            "w_phi": _w((lambda *s: torch.randn(*s, dtype=torch.bfloat16) * 0.8)(H, Dh, Dh) * (Dh ** -0.5)),
            "wo": _w((lambda *s: torch.randn(*s, dtype=torch.bfloat16) * 0.8)(D, D)),
        }
    _A_in = _A_setup()

    def _B_setup():
        B, S, D, F = 1, 2048, 512, 1376
        return {
            "x": _w((lambda *s: torch.randn(*s, dtype=torch.bfloat16) * 0.05)(B, S, D)),
            "w1": _w((lambda *s: torch.randn(*s, dtype=torch.bfloat16) * 0.2)(D, F) * (2.0 / D) ** 0.5),
            "w3": _w((lambda *s: torch.randn(*s, dtype=torch.bfloat16) * 0.2)(D, F) * (2.0 / D) ** 0.5),
            "w2": _w((lambda *s: torch.randn(*s, dtype=torch.bfloat16) * 0.2)(F, D) * (2.0 / F) ** 0.5),
        }
    _B_in = _B_setup()

    return {
        "A_x": _A_in["x"],
        "A_wqkv": _A_in["wqkv"],
        "A_w_phi": _A_in["w_phi"],
        "A_wo": _A_in["wo"],
        "B_x": _B_in["x"],
        "B_w1": _B_in["w1"],
        "B_w3": _B_in["w3"],
        "B_w2": _B_in["w2"],
    }

def reference(A_x, A_wqkv, A_w_phi, A_wo, B_x, B_w1, B_w3, B_w2):
    def _A_ref(x, wqkv, w_phi, wo):
        B, S, D = x.shape
        H = 32; Dh = D // H
        qkv = (lambda x, *d: x.permute(*d))((x @ wqkv).reshape(B, S, 3, H, Dh), 2, 0, 3, 1, 4)
        q, k, v = qkv[0], qkv[1], qkv[2]
        pq = torch.einsum("bhsd,hdf->bhsf", q, w_phi)
        pk = torch.einsum("bhsd,hdf->bhsf", k, w_phi)
        phi_q = torch.concatenate([_softmax(pq, axis=-1), _softmax(-pq, axis=-1)], axis=-1)
        phi_k = torch.concatenate([_softmax(pk, axis=-1), _softmax(-pk, axis=-1)], axis=-1)
        kv = torch.einsum("bhsf,bhsd->bhfd", phi_k, v)
        z  = torch.einsum("bhsf->bhf", phi_k)
        num = torch.einsum("bhqf,bhfd->bhqd", phi_q, kv)
        den = torch.einsum("bhqf,bhf->bhq", phi_q, z)[..., None] + 1e-6
        o = num / den
        return (lambda x, *d: x.permute(*d))(o, 0, 2, 1, 3).reshape(B, S, D) @ wo

    def _B_ref(x, w1, w3, w2):
        gate = torch.einsum("bsd,df->bsf", x, w1)
        up = torch.einsum("bsd,df->bsf", x, w3)
        h = _silu(gate) * up
        out = torch.einsum("bsf,fd->bsd", h, w2)
        return out

    x = A_x
    xn = _layernorm(x, axis=-1)
    s = _A_ref(xn, A_wqkv, A_w_phi, A_wo)
    g = _silu(_B_ref(xn, B_w1, B_w3, B_w2))
    return x + s * g
```

```python
from __main__ import vr, kdesc, rb_pair, MB, H_OFF, PHI_OFF, KV_OFF, Z_OFF, WS_SIZE, LOG2E
RED = 17408
K3_LDS = 8 * RED
LAUNCH = f"; @launch kernel=k3_kernel grid=(256,1,1) block=(512,1,1) lds={K3_LDS}"
def desc(): return kdesc("k3_kernel", 256)
ACC = 16
def acc(u, b): return ACC + (u * 4 + b) * 4
BF = 144

def gen(a):
    a.l.append(".p2align 8"); a.l.append(".globl k3_kernel"); a.l.append(".type k3_kernel,@function"); a.lab("k3_kernel")
    a("s_cmp_ge_u32 s2, 256"); a("s_cbranch_scc1 k3_end")
    a("s_load_dwordx2 s[4:5], s[0:1], 0")
    a("s_load_dwordx2 s[6:7], s[0:1], 24")
    a("s_load_dwordx4 s[8:11], s[0:1], 56")
    a("s_load_dwordx2 s[12:13], s[0:1], 80")
    a("v_lshrrev_b32 v1, 6, v0"); a("v_and_b32 v2, 63, v0"); a.nop(1)
    a("v_readfirstlane_b32 s14, v1")
    a("s_and_b32 s3, s2, 7"); a("s_lshr_b32 s15, s2, 3")
    a("s_lshr_b32 s62, s15, 3"); a("s_lshl_b32 s3, s3, 2"); a("s_add_u32 s62, s62, s3"); a("s_lshl_b32 s62, s62, 6")
    a("s_and_b32 s63, s15, 7"); a("s_lshl_b32 s63, s63, 7")
    a(f"s_mov_b32 s61, {LOG2E:#x}")
    a("s_waitcnt lgkmcnt(0)")
    a.srd(16, 4, 5, 2 * MB); a.srd(20, 6, 7, 512 * 1024); a.srd(24, 12, 13, WS_SIZE)
    a.srd(28, 8, 9, 1376 * 1024); a.srd(32, 10, 11, 2 * MB)
    a("v_lshrrev_b32 v3, 3, v0"); a("v_add_u32 v3, s62, v3"); a("v_lshlrev_b32 v3, 10, v3")
    a("v_and_b32 v4, 7, v0"); a("v_lshl_add_u32 v3, v4, 4, v3"); a("v_add_u32 v3, s63, v3")
    a("buffer_load_dwordx4 v[12:15], v3, s[16:19], 0 offen")
    a("v_lshrrev_b32 v8, 2, v2"); a("v_lshlrev_b32 v8, 7, v8"); a("v_and_b32 v9, 3, v2"); a("v_lshl_add_u32 v8, v9, 3, v8")
    a("s_lshl_b32 s64, s14, 14"); a("v_add_u32 v8, s64, v8")
    a("v_bfe_u32 v9, v2, 3, 2")
    for u in range(4):
        a(f"v_xor_b32 v10, {u}, v9"); a(f"v_lshl_add_u32 v{4+u}, v10, 5, v8")
    a("v_bfe_u32 v8, v2, 1, 2"); a("v_bfe_u32 v9, v2, 4, 2"); a("v_xor_b32 v8, v8, v9"); a("v_lshlrev_b32 v8, 5, v8")
    a("v_and_b32 v9, 1, v2"); a("v_lshl_add_u32 v8, v9, 4, v8"); a("v_add_u32 v8, s63, v8")
    a("s_cmp_ge_u32 s14, 4"); a("s_cbranch_scc1 k3_swave")
    a("v_lshrrev_b32 v9, 5, v2"); a("v_lshlrev_b32 v9, 3, v9"); a("v_bfe_u32 v10, v2, 3, 2"); a("v_add_u32 v9, v9, v10")
    a("v_lshl_add_u32 v8, v9, 10, v8")
    a("s_mul_i32 s65, s14, 11")
    a("v_and_b32 v9, 15, v2"); a("v_add_u32 v9, s62, v9"); a("s_movk_i32 s66, 2752"); a("v_mul_lo_u32 v9, v9, s66")
    a("v_lshrrev_b32 v10, 4, v2"); a("v_lshl_add_u32 v9, v10, 4, v9")
    a("s_lshl_b32 s66, s65, 6"); a(f"s_add_u32 s66, s66, {H_OFF}"); a("v_add_u32 v160, s66, v9")
    for b in range(1, 4): a(f"v_add_u32 v{160+b}, {b*16*2752}, v160")
    a("s_lshl_b32 s65, s65, 15")
    AR = 80
    def oload(t):
        for b in range(4):
            a(f"buffer_load_dwordx4 {vr(AR+(t%4)*16+b*4,4)}, v{160+b}, s[24:27], 0 offen offset:{t*64}")
        for q, dl in enumerate((0, 16, 4, 20)):
            a(f"s_add_u32 m0, s64, {(t%4)*4096+q*1024}")
            a(f"s_add_u32 s66, s65, {t*32768+dl*1024}")
            a(f"buffer_load_dwordx4 v8, s[28:31], s66 offen lds")
    NST = 11
    for t in range(3): oload(t)
    for t in range(NST):
        rem = min(2, NST - 1 - t)
        a(f"s_waitcnt vmcnt({8*rem})")
        if t == NST - 1: a("s_cmp_eq_u32 s14, 3"); a("s_cbranch_scc1 k3_red")
        for u in range(4):
            for j in range(2):
                a(f"ds_read_b64_tr_b16 {vr(BF+u*4+2*j,2)}, v{4+u} offset:{(t%4)*4096+j*2048}")
        if t + 3 < NST: oload(t + 3)
        for u in range(4):
            a(f"s_waitcnt lgkmcnt({6-2*u})")
            for b in range(4):
                c = "0" if t == 0 else vr(acc(u, b), 4)
                a(f"v_mfma_f32_16x16x32_bf16 {vr(acc(u,b),4)}, {vr(BF+u*4,4)}, {vr(AR+(t%4)*16+b*4,4)}, {c}")
    a("s_branch k3_red")
    a.lab("k3_swave")
    a("v_lshrrev_b32 v9, 3, v2"); a("v_lshl_add_u32 v8, v9, 10, v8")
    a("s_sub_u32 s65, s14, 4")
    a("s_lshl_b32 s66, s65, 17")
    for p in range(4):
        for q in range(4):
            a(f"s_add_u32 m0, s64, {p*4096+q*1024}")
            a(f"s_add_u32 s67, s66, {p*32768+q*8192}")
            a(f"buffer_load_dwordx4 v8, s[20:23], s67 offen lds")
    a("v_and_b32 v9, 15, v2"); a("v_add_u32 v9, s62, v9"); a("v_lshlrev_b32 v9, 11, v9")
    a("v_lshrrev_b32 v10, 4, v2"); a("v_lshl_add_u32 v9, v10, 4, v9")
    a("s_lshl_b32 s67, s65, 9"); a(f"s_add_u32 s67, s67, {PHI_OFF}"); a("v_add_u32 v240, s67, v9")
    for b in range(1, 4): a(f"v_add_u32 v{240+b}, {b*32768}, v240")
    a("v_and_b32 v9, 15, v2"); a("v_lshlrev_b32 v9, 7, v9"); a("v_lshl_add_u32 v9, v10, 5, v9")
    a("s_lshl_b32 s67, s65, 14"); a(f"s_add_u32 s67, s67, {KV_OFF}"); a("v_add_u32 v244, s67, v9")
    a("s_lshl_b32 s67, s65, 10"); a(f"s_add_u32 s67, s67, {Z_OFF}"); a("v_lshlrev_b32 v9, 5, v10"); a("v_add_u32 v245, s67, v9")
    LB = 80
    def sload(p):
        base = LB + (p % 2) * 64
        for hh in range(2):
            h = 2 * p + hh
            for b in range(4): a(f"buffer_load_dwordx4 {vr(base+hh*32+b*4,4)}, v{240+b}, s[24:27], 0 offen offset:{h*64}")
            a(f"s_movk_i32 s67, {h*2048}")
            for q in range(2): a(f"buffer_load_dwordx4 {vr(base+hh*32+16+q*4,4)}, v244, s[24:27], s67 offen offset:{q*16}")
            for q in range(2): a(f"buffer_load_dwordx4 {vr(base+hh*32+24+q*4,4)}, v245, s[24:27], 0 offen offset:{h*128+q*16}")
    sload(0); sload(1)
    OB = 208
    for p in range(4):
        base = LB + (p % 2) * 64
        a(f"s_waitcnt vmcnt({16 if p < 3 else 0})")
        for hh in range(2):
            hb = base + hh * 32
            for i in range(4): a(f"v_cvt_pk_bf16_f32 v{224+i}, v{hb+16+2*i}, v{hb+17+2*i}")
            for i in range(4): a(f"v_cvt_pk_bf16_f32 v{228+i}, v{hb+24+2*i}, v{hb+25+2*i}")
            a.nop(2)
            for b in range(4):
                a(f"v_mfma_f32_16x16x32_bf16 v[232:235], v[224:227], {vr(hb+b*4,4)}, 0")
                a(f"v_mfma_f32_16x16x32_bf16 v[236:239], v[228:231], {vr(hb+b*4,4)}, 0")
                a.nop(8)
                rb_pair(a, 232, 233, 237); rb_pair(a, 234, 235, 237)
                a("v_cvt_pk_bf16_f32 v236, v236, v236"); a("v_lshlrev_b32 v236, 16, v236")
                a("v_add_f32 v236, 0x358637bd, v236")
                a("v_cvt_pk_bf16_f32 v236, v236, v236"); a("v_lshlrev_b32 v236, 16, v236")
                a("v_rcp_f32 v236, v236"); a.nop(1)
                for i in range(4): a(f"v_mul_f32 v{232+i}, v{232+i}, v236")
                a(f"v_cvt_pk_bf16_f32 v{OB+b*4+hh*2}, v232, v233"); a(f"v_cvt_pk_bf16_f32 v{OB+b*4+hh*2+1}, v234, v235")
        if p + 2 < 4: sload(p + 2)
        for u in range(4):
            for j in range(2):
                a(f"ds_read_b64_tr_b16 {vr(BF2+u*4+2*j,2)}, v{4+u} offset:{p*4096+j*2048}")
        for u in range(4):
            a(f"s_waitcnt lgkmcnt({6-2*u})")
            for b in range(4):
                c = "0" if p == 0 else vr(acc(u, b), 4)
                a(f"v_mfma_f32_16x16x32_bf16 {vr(acc(u,b),4)}, {vr(BF2+u*4,4)}, {vr(OB+b*4,4)}, {c}")
    a.lab("k3_red")
    a.nop(8)
    a("s_barrier")
    a("v_and_b32 v8, 15, v2"); a("v_mul_u32_u24 v8, 272, v8"); a("v_lshrrev_b32 v9, 4, v2"); a("v_lshl_add_u32 v8, v9, 4, v8")
    a(f"s_mul_i32 s66, s14, {RED}"); a("v_add_u32 v8, s66, v8")
    for u in range(4):
        for b in range(4):
            a(f"ds_write_b128 v8, {vr(acc(u,b),4)} offset:{b*4352+u*64}")
    a("s_waitcnt lgkmcnt(0)"); a("s_barrier")
    a("v_lshrrev_b32 v8, 3, v0"); a("v_mul_u32_u24 v8, 272, v8"); a("v_and_b32 v9, 7, v0"); a("v_lshl_add_u32 v8, v9, 5, v8")
    a(f"v_add_u32 v9, {4*RED}, v8")
    for w in range(8):
        for q in range(2):
            a(f"ds_read_b128 {vr(16+w*8+q*4,4)}, v{8+(w>>2)} offset:{(w&3)*RED+q*16}")
    a("s_waitcnt lgkmcnt(0)")
    for i in range(8):
        a(f"v_add_f32 v{16+i}, v{16+i}, v{24+i}"); a(f"v_add_f32 v{32+i}, v{32+i}, v{40+i}")
        a(f"v_add_f32 v{48+i}, v{48+i}, v{56+i}"); a(f"v_add_f32 v{64+i}, v{64+i}, v{72+i}")
    for i in range(8):
        a(f"v_add_f32 v{16+i}, v{16+i}, v{32+i}"); a(f"v_add_f32 v{48+i}, v{48+i}, v{64+i}")
    for i in range(0, 8, 2): rb_pair(a, 16 + i, 17 + i, 80); rb_pair(a, 48 + i, 49 + i, 80)
    for i in range(8): a(f"v_mul_f32 v{32+i}, s61, v{16+i}")
    for i in range(8): a(f"v_exp_f32 v{32+i}, -v{32+i}")
    a.nop(1)
    for i in range(8): a(f"v_add_f32 v{32+i}, 1.0, v{32+i}")
    for i in range(8): a(f"v_rcp_f32 v{32+i}, v{32+i}")
    a.nop(1)
    for i in range(8): a(f"v_mul_f32 v{32+i}, v{32+i}, v{16+i}")
    for i in range(0, 8, 2): rb_pair(a, 32 + i, 33 + i, 80)
    for i in range(8): a(f"v_mul_f32 v{32+i}, v{32+i}, v{48+i}")
    for i in range(0, 8, 2): rb_pair(a, 32 + i, 33 + i, 80)
    a("s_waitcnt vmcnt(0)")
    for i in range(4):
        a(f"v_lshlrev_b32 v{64+2*i}, 16, v{12+i}"); a(f"v_and_b32 v{65+2*i}, 0xffff0000, v{12+i}")
    for i in range(8): a(f"v_add_f32 v{32+i}, v{32+i}, v{64+i}")
    for i in range(4): a(f"v_cvt_pk_bf16_f32 v{12+i}, v{32+2*i}, v{33+2*i}")
    a("buffer_store_dwordx4 v[12:15], v3, s[32:35], 0 offen")
    a.lab("k3_end"); a("s_endpgm")
BF2 = 224
```

```python
import sys, re
NAME = "recurrent_scan__linear_kernel_hedgehog__glu_gated_swiglu__prompt"
MB = 1 << 20
XN_OFF, H_OFF, PHI_OFF, KV_OFF = 0, 2 * MB, 8 * MB, 12 * MB
Z_OFF = KV_OFF + 65536
WS_SIZE = 16 * MB
LOG2E = 0x3fb8aa3b
import os
DBG = bool(os.environ.get('GDBG'))

class Asm:
    def __init__(s): s.l = []
    def __call__(s, t):
        m = re.search(r"offset:(\d+)", t)
        if m and t.startswith("buffer_"): assert int(m.group(1)) <= 4095, t
        if m and t.startswith("ds_"): assert int(m.group(1)) <= 65535, t
        s.l.append("    " + t)
    def lab(s, t): s.l.append(t + ":")
    def nop(s, n):
        while n > 0:
            k = min(n, 16); s(f"s_nop {k-1}"); n -= k
    def srd(s, d, lo, hi, size):
        s(f"s_mov_b32 s{d}, s{lo}"); s(f"s_and_b32 s{d+1}, s{hi}, 0xffff")
        s(f"s_mov_b32 s{d+2}, {size}"); s(f"s_mov_b32 s{d+3}, 0x00020000")

def vr(a, n): return f"v[{a}:{a+n-1}]"

def kdesc(name, vgpr, sgpr=96):
    return f""".p2align 6
.amdhsa_kernel {name}
  .amdhsa_next_free_vgpr {vgpr}
  .amdhsa_next_free_sgpr {sgpr}
  .amdhsa_accum_offset {(vgpr+3)//4*4}
  .amdhsa_group_segment_fixed_size 0
  .amdhsa_kernarg_size 88
  .amdhsa_user_sgpr_count 2
  .amdhsa_user_sgpr_kernarg_segment_ptr 1
  .amdhsa_system_sgpr_workgroup_id_x 1
.end_amdhsa_kernel
"""

def gen_k0(a):
    a.l.append(".p2align 8"); a.l.append(".globl k0_kernel"); a.l.append(".type k0_kernel,@function"); a.lab("k0_kernel")
    a("s_cmp_ge_u32 s2, 512"); a("s_cbranch_scc1 k0_end")
    a("s_load_dwordx2 s[4:5], s[0:1], 0"); a("s_load_dwordx2 s[6:7], s[0:1], 80")
    a("v_and_b32 v1, 15, v0"); a("v_lshrrev_b32 v2, 4, v0")
    a("s_lshl_b32 s3, s2, 12")
    a("v_lshlrev_b32 v3, 10, v2"); a("v_lshl_add_u32 v3, v1, 4, v3"); a("v_add_u32 v3, s3, v3")
    a("s_waitcnt lgkmcnt(0)")
    a.srd(8, 4, 5, 2 * MB); a.srd(12, 6, 7, WS_SIZE)
    for c in range(4): a(f"buffer_load_dwordx4 {vr(4+4*c,4)}, v3, s[8:11], 0 offen offset:{256*c}")
    a("s_cmp_ge_u32 s2, 68"); a("s_cbranch_scc1 k0_nz")
    for i in range(4): a(f"v_mov_b32 v{20+i}, 0")
    a("s_lshl_b32 s16, s2, 10"); a(f"s_add_u32 s16, s16, {KV_OFF}")
    a("v_lshlrev_b32 v24, 4, v0"); a("v_add_u32 v24, s16, v24")
    a("buffer_store_dwordx4 v[20:23], v24, s[12:15], 0 offen")
    a.lab("k0_nz")
    a("s_waitcnt vmcnt(0)")
    for i in range(16):
        a(f"v_lshlrev_b32 v{32+2*i}, 16, v{4+i}"); a(f"v_and_b32 v{33+2*i}, 0xffff0000, v{4+i}")
    for i in range(16): a(f"v_add_f32 v{64+i}, v{32+2*i}, v{33+2*i}")
    n = 16
    while n > 1:
        for i in range(n // 2): a(f"v_add_f32 v{64+i}, v{64+i}, v{64+i+n//2}")
        n //= 2
    def red16(r):
        for sh in (8, 4, 2, 1):
            a.nop(2); a(f"v_add_f32_dpp v{r}, v{r}, v{r} row_ror:{sh} row_mask:0xf bank_mask:0xf")
    red16(64)
    a("v_mul_f32 v64, 0x3b000000, v64")
    a("v_cvt_pk_bf16_f32 v65, v64, v64"); a("v_lshlrev_b32 v65, 16, v65")
    for i in range(32): a(f"v_sub_f32 v{80+i}, v{32+i}, v64")
    for i in range(16): a(f"v_mul_f32 v{112+i}, v{80+2*i}, v{80+2*i}")
    for i in range(16): a(f"v_fmac_f32 v{112+i}, v{81+2*i}, v{81+2*i}")
    n = 16
    while n > 1:
        for i in range(n // 2): a(f"v_add_f32 v{112+i}, v{112+i}, v{112+i+n//2}")
        n //= 2
    red16(112)
    a("v_mul_f32 v66, 0x3b000000, v112")
    a("v_cvt_pk_bf16_f32 v66, v66, v66"); a("v_lshlrev_b32 v66, 16, v66")
    a("v_add_f32 v66, 0x3727c5ac, v66")
    a("v_cvt_pk_bf16_f32 v66, v66, v66"); a("v_lshlrev_b32 v66, 16, v66")
    a("v_sqrt_f32 v66, v66"); a.nop(1)
    a("v_cvt_pk_bf16_f32 v66, v66, v66"); a("v_lshlrev_b32 v66, 16, v66")
    a("v_rcp_f32 v66, v66"); a.nop(1)
    for i in range(32): a(f"v_sub_f32 v{80+i}, v{32+i}, v65")
    for i in range(16): a(f"v_cvt_pk_bf16_f32 v{112+i}, v{80+2*i}, v{81+2*i}")
    for i in range(16):
        a(f"v_lshlrev_b32 v{80+2*i}, 16, v{112+i}"); a(f"v_and_b32 v{81+2*i}, 0xffff0000, v{112+i}")
    for i in range(32): a(f"v_mul_f32 v{80+i}, v{80+i}, v66")
    for i in range(16): a(f"v_cvt_pk_bf16_f32 v{4+i}, v{80+2*i}, v{81+2*i}")
    for c in range(4): a(f"buffer_store_dwordx4 {vr(4+4*c,4)}, v3, s[12:15], 0 offen offset:{256*c}")
    a.lab("k0_end"); a("s_endpgm")

STG = 36864
NSLOT = 4
WPHI_LDS = STG * NSLOT
K1_LDS = WPHI_LDS + 8192
A0, BR, ACC = 48, 32, 176
def areg(b, kb): return A0 + (b * 16 + kb) * 4
def accreg(R, ui, b): return ACC + ((R * 5 + ui) * 2 + b) * 4

def k1_mainloop(a, tag, NU, nd, transp):
    def dma(stage):
        sl = stage % NSLOT
        for i in range(nd):
            a(f"s_add_u32 m0, s{52+i}, {sl*STG}")
            a(f"s_mul_i32 s60, s57, {stage*64}")
            a(f"buffer_load_dwordx4 v{20+i}, s[{32+4*i}:{35+4*i}], s60 offen lds")
    items = [(kb, R, ui) for kb in range(2) for R in range(2) for ui in range(NU)]
    def rd(stage, it):
        kb, R, ui = items[it]
        u = 8 if ui == 4 else ui
        off = kb * 18432 + R * 9216 + u * 32
        br = BR + (it % 4) * 4
        a(f"ds_read_b64_tr_b16 {vr(br,2)}, v{16+stage%NSLOT} offset:{off}")
        a(f"ds_read_b64_tr_b16 {vr(br+2,2)}, v{16+stage%NSLOT} offset:{off+4608}")
    for st in range(8):
        rem = min(2, 7 - st)
        a(f"s_waitcnt vmcnt({rem*nd})"); a("s_barrier")
        if st + 3 < 8: dma(st + 3)
        n = len(items)
        for it in range(3): rd(st, it)
        for it in range(n):
            if it + 3 < n: rd(st, it + 3)
            ahead = min(3, n - 1 - it)
            a(f"s_waitcnt lgkmcnt({2*ahead})")
            kb, R, ui = items[it]
            br = BR + (it % 4) * 4
            for b in range(2):
                ac = accreg(R, ui, b); ar = areg(b, st * 2 + kb)
                c = "0" if (st == 0 and kb == 0) else vr(ac, 4)
                if transp[R]: a(f"v_mfma_f32_16x16x32_bf16 {vr(ac,4)}, {vr(br,4)}, {vr(ar,4)}, {c}")
                else: a(f"v_mfma_f32_16x16x32_bf16 {vr(ac,4)}, {vr(ar,4)}, {vr(br,4)}, {c}")

def rb_pair(a, x0, x1, t):
    a(f"v_cvt_pk_bf16_f32 v{t}, v{x0}, v{x1}")
    a(f"v_lshlrev_b32 v{x0}, 16, v{t}"); a(f"v_and_b32 v{x1}, 0xffff0000, v{t}")

def phi_block(a, ac, wp, T, outp, outm):
    t0 = T; p = T + 2; e = T + 6; f = T + 10; mx = T + 14; nm = T + 15; c = T + 16; d = T + 17
    a(f"v_cvt_pk_bf16_f32 v{t0}, v{ac}, v{ac+1}"); a(f"v_cvt_pk_bf16_f32 v{t0+1}, v{ac+2}, v{ac+3}")
    a.nop(2)
    a(f"v_mfma_f32_16x16x16_bf16 {vr(p,4)}, {vr(wp,2)}, {vr(t0,2)}, 0")
    a.nop(8)
    rb_pair(a, p, p + 1, t0); rb_pair(a, p + 2, p + 3, t0 + 1)
    a(f"v_max3_f32 v{mx}, v{p}, v{p+1}, v{p+2}"); a(f"v_max3_f32 v{nm}, -v{p}, -v{p+1}, -v{p+2}")
    a(f"v_max_f32 v{mx}, v{mx}, v{p+3}"); a(f"v_max_f32_e64 v{nm}, v{nm}, -v{p+3}")
    def cross(x, y, op):
        a.nop(2); a(f"v_permlane32_swap_b32 v{x}, v{y}")
        a(f"{op} v{c}, v{x}, v{y}"); a(f"v_mov_b32 v{d}, v{c}")
        a.nop(2); a(f"v_permlane16_swap_b32 v{c}, v{d}")
        a(f"{op} v{x}, v{c}, v{d}"); a(f"v_mov_b32 v{y}, v{x}")
        a.nop(2); a(f"v_permlane32_swap_b32 v{x}, v{y}")
    cross(mx, nm, "v_max_f32")
    a(f"v_mul_f32 v{mx}, s61, v{mx}"); a(f"v_mul_f32 v{nm}, s61, v{nm}")
    for i in range(4):
        a(f"v_fma_f32 v{e+i}, v{p+i}, s61, -v{mx}"); a(f"v_fma_f32 v{f+i}, -v{p+i}, s61, -v{nm}")
    for i in range(4):
        a(f"v_exp_f32 v{e+i}, v{e+i}"); a(f"v_exp_f32 v{f+i}, v{f+i}")
    a.nop(1)
    a(f"v_add_f32 v{mx}, v{e}, v{e+1}"); a(f"v_add_f32 v{nm}, v{f}, v{f+1}")
    a(f"v_add_f32 v{c}, v{e+2}, v{e+3}"); a(f"v_add_f32 v{d}, v{f+2}, v{f+3}")
    a(f"v_add_f32 v{mx}, v{mx}, v{c}"); a(f"v_add_f32 v{nm}, v{nm}, v{d}")
    cross(mx, nm, "v_add_f32")
    a(f"v_rcp_f32 v{mx}, v{mx}"); a(f"v_rcp_f32 v{nm}, v{nm}"); a.nop(1)
    for i in range(4):
        a(f"v_mul_f32 v{e+i}, v{e+i}, v{mx}"); a(f"v_mul_f32 v{f+i}, v{f+i}, v{nm}")
    a(f"v_cvt_pk_bf16_f32 v{outp}, v{e}, v{e+1}"); a(f"v_cvt_pk_bf16_f32 v{outp+1}, v{e+2}, v{e+3}")
    a(f"v_cvt_pk_bf16_f32 v{outm}, v{f}, v{f+1}"); a(f"v_cvt_pk_bf16_f32 v{outm+1}, v{f+2}, v{f+3}")

def gen_k1(a):
    a.l.append(".p2align 8"); a.l.append(".globl k1_kernel"); a.l.append(".type k1_kernel,@function"); a.lab("k1_kernel")
    a("s_cmp_ge_u32 s2, 256"); a("s_cbranch_scc1 k1_end")
    a("s_load_dwordx4 s[4:7], s[0:1], 8")
    a("s_load_dwordx4 s[8:11], s[0:1], 40")
    a("s_load_dwordx2 s[12:13], s[0:1], 80")
    a("v_lshrrev_b32 v1, 6, v0"); a("v_and_b32 v2, 63, v0"); a.nop(1)
    a("v_readfirstlane_b32 s14, v1")
    a("s_and_b32 s3, s2, 7"); a("s_lshr_b32 s15, s2, 3")
    a("s_and_b32 s62, s15, 1"); a("s_lshl_b32 s3, s3, 1"); a("s_add_u32 s62, s62, s3")
    a("s_lshr_b32 s63, s15, 1")
    a("s_and_b32 s64, s14, 3")
    a("s_lshr_b32 s65, s14, 2")
    a(f"s_mov_b32 s61, {LOG2E:#x}")
    a("s_waitcnt lgkmcnt(0)")
    a.srd(24, 12, 13, WS_SIZE)
    a.srd(28, 6, 7, 16384)
    a("s_cmp_ge_u32 s62, 6"); a("s_cbranch_scc1 k1_sel_gu")
    a.srd(16, 4, 5, 512 * 1536 * 2); a.srd(20, 4, 5, 512 * 1536 * 2)
    a("s_movk_i32 s57, 3072")
    a("s_cmp_ge_u32 s62, 4"); a("s_cbranch_scc1 k1_sel_q")
    a("s_lshl_b32 s58, s62, 8"); a("s_add_u32 s59, s58, 2048"); a("s_add_u32 s58, s58, 1024")
    a("s_lshl_b32 s66, s62, 12")
    a("s_branch k1_sel_done")
    a.lab("k1_sel_q")
    a("s_sub_u32 s58, s62, 4"); a("s_lshl_b32 s66, s58, 13"); a("s_lshl_b32 s58, s58, 9"); a("s_add_u32 s59, s58, 256")
    a("s_branch k1_sel_done")
    a.lab("k1_sel_gu")
    a.srd(16, 8, 9, 512 * 1376 * 2); a.srd(20, 10, 11, 512 * 1376 * 2)
    a("s_movk_i32 s57, 2752")
    a("s_sub_u32 s58, s62, 6"); a("s_mul_i32 s58, s58, 288"); a("s_mov_b32 s59, s58"); a("s_mov_b32 s66, 0")
    a.lab("k1_sel_done")
    a("s_mul_i32 s67, s64, 5"); a("s_lshl_b32 s68, s64, 2"); a("s_add_u32 s68, s68, 20")
    a("s_cmp_eq_u32 s65, 1"); a("s_cselect_b32 s67, s67, s68")
    a("v_lshlrev_b32 v3, 4, v2")
    for i in range(5):
        a(f"s_add_u32 s68, s67, {i}")
        a("s_cmp_ge_u32 s68, 18"); a("s_cselect_b32 s69, 1, 0")
        a("s_mul_i32 s70, s69, 18"); a("s_sub_u32 s68, s68, s70")
        a("s_cmp_ge_u32 s68, 9"); a("s_cselect_b32 s70, 1, 0")
        for w in range(4): a(f"s_cselect_b32 s{32+4*i+w}, s{20+w}, s{16+w}")
        a("s_cselect_b32 s72, s59, s58")
        a("s_mul_i32 s71, s70, 9"); a("s_sub_u32 s68, s68, s71")
        a("s_mul_i32 s71, s69, 18432"); a(f"s_mul_i32 s{52+i}, s70, 9216"); a(f"s_add_u32 s{52+i}, s{52+i}, s71")
        a("s_lshl_b32 s71, s68, 10"); a(f"s_add_u32 s{52+i}, s{52+i}, s71")
        a("v_add_u32 v4, s71, v3")
        a("v_mul_u32_u24 v5, 58255, v4"); a("v_lshrrev_b32 v5, 24, v5")
        a("v_mul_u32_u24 v6, 288, v5"); a("v_sub_u32 v6, v4, v6")
        a("v_bfe_u32 v7, v5, 2, 2"); a("v_lshlrev_b32 v7, 3, v7")
        a("v_lshrrev_b32 v8, 4, v5"); a("v_lshl_add_u32 v7, v8, 2, v7")
        a("v_and_b32 v8, 3, v5"); a("v_add_u32 v7, v7, v8")
        a("s_lshl_b32 s71, s69, 5"); a("v_add_u32 v7, s71, v7")
        a("v_mul_lo_u32 v7, v7, s57")
        a("v_add3_u32 v7, v7, v6, s72")
        a(f"v_mov_b32 v{20+i}, v7")
    a("v_lshrrev_b32 v4, 2, v2"); a("v_mul_u32_u24 v4, 288, v4")
    a("v_and_b32 v5, 3, v2"); a("v_lshl_add_u32 v4, v5, 3, v4")
    a("s_lshl_b32 s68, s65, 7"); a("v_add_u32 v16, s68, v4")
    for s in range(1, 4): a(f"v_add_u32 v{16+s}, {s*STG}, v16")
    a("s_lshl_b32 s68, s63, 7"); a("s_lshl_b32 s69, s64, 5"); a("s_add_u32 s73, s68, s69")
    a("v_and_b32 v4, 15, v2"); a("v_add_u32 v4, s73, v4"); a("v_lshlrev_b32 v26, 10, v4")
    a("v_lshrrev_b32 v5, 4, v2"); a("v_lshl_add_u32 v26, v5, 4, v26")
    a("v_add_u32 v27, 0x4000, v26")
    a("s_lshl_b32 s68, s14, 10"); a("s_add_u32 s69, s66, s68"); a("v_add_u32 v9, s69, v3")
    a(f"s_add_u32 s68, s68, {WPHI_LDS}")
    def prologue(nd):
        def dma(stage):
            for i in range(nd):
                a(f"s_add_u32 m0, s{52+i}, {stage*STG}")
                a(f"s_mul_i32 s60, s57, {stage*64}")
                a(f"buffer_load_dwordx4 v{20+i}, s[{32+4*i}:{35+4*i}], s60 offen lds")
        dma(0)
        a("s_mov_b32 m0, s68"); a.nop(1)
        a("buffer_load_dwordx4 v9, s[28:31], 0 offen lds")
        for kb in range(16):
            for b in range(2):
                a(f"buffer_load_dwordx4 {vr(areg(b,kb),4)}, v{26+b}, s[24:27], 0 offen offset:{kb*64}")
        dma(1); dma(2)
    a("s_cmp_eq_u32 s65, 1"); a("s_cbranch_scc1 k1_wc1")
    prologue(4)
    a("s_cmp_ge_u32 s62, 6"); a("s_cbranch_scc1 k1_gu5")
    a("s_cmp_ge_u32 s62, 4"); a("s_cbranch_scc1 k1_q_a")
    k1_mainloop(a, "kva", 4, 4, (True, False)); a("s_branch k1_kv_epi")
    a.lab("k1_q_a"); k1_mainloop(a, "qa", 4, 4, (True, True)); a("s_branch k1_q_epi")
    a.lab("k1_gu5"); k1_mainloop(a, "gu5", 5, 4, (True, True)); a("s_branch k1_gu_epi")
    a.lab("k1_wc1")
    prologue(5)
    a("s_cmp_ge_u32 s62, 4"); a("s_cbranch_scc1 k1_tt_b")
    k1_mainloop(a, "kvb", 4, 5, (True, False)); a("s_branch k1_kv_epi")
    a.lab("k1_tt_b"); k1_mainloop(a, "ttb", 4, 5, (True, True))
    a("s_cmp_ge_u32 s62, 6"); a("s_cbranch_scc1 k1_gu_epi")
    a.lab("k1_q_epi")
    a.nop(8)
    a(f"v_lshlrev_b32 v3, 3, v2"); a(f"v_add_u32 v3, {WPHI_LDS}, v3")
    a("s_lshl_b32 s68, s65, 11"); a("v_add_u32 v3, s68, v3")
    a("v_and_b32 v4, 15, v2"); a("v_add_u32 v4, s73, v4"); a("v_lshlrev_b32 v4, 11, v4")
    a("v_lshrrev_b32 v5, 4, v2"); a("v_lshl_add_u32 v4, v5, 4, v4")
    a("s_sub_u32 s68, s62, 4"); a("s_lshl_b32 s68, s68, 10"); a("s_lshl_b32 s69, s65, 8"); a("s_add_u32 s68, s68, s69")
    a(f"s_add_u32 s68, s68, {PHI_OFF}"); a("v_add_u32 v4, s68, v4"); a("v_add_u32 v5, 0x8000, v4")
    for R in range(2):
        for ui in range(4):
            a(f"ds_read_b64_tr_b16 v[6:7], v3 offset:{(8*R+ui)*512}"); a("s_waitcnt lgkmcnt(0)")
            for b in range(2):
                o = 48 + b * 4
                phi_block(a, accreg(R, ui, b), 6, 60, o, o + 2)
                a(f"buffer_store_dwordx4 {vr(o,4)}, v{4+b}, s[24:27], 0 offen offset:{(8*R+ui)*64}")
    a("s_branch k1_end")
    a.lab("k1_kv_epi")
    a.nop(8)
    a("s_barrier")
    a(f"v_lshlrev_b32 v3, 3, v2"); a(f"v_add_u32 v3, {WPHI_LDS}, v3")
    a("s_lshl_b32 s68, s65, 11"); a("v_add_u32 v3, s68, v3")
    a("v_and_b32 v4, 15, v2"); a("v_lshrrev_b32 v5, 4, v2"); a("v_lshlrev_b32 v5, 2, v5"); a("v_sub_u32 v4, v4, v5")
    a("v_mov_b32 v10, 0x3f80"); a("v_mov_b32 v11, 0x3f800000"); a("v_mov_b32 v8, 0"); a("v_mov_b32 v9, 0")
    a("v_cmp_eq_u32 vcc, 0, v4"); a.nop(2); a("v_cndmask_b32 v8, v8, v10, vcc")
    a("v_cmp_eq_u32 vcc, 1, v4"); a.nop(2); a("v_cndmask_b32 v8, v8, v11, vcc")
    a("v_cmp_eq_u32 vcc, 2, v4"); a.nop(2); a("v_cndmask_b32 v9, v9, v10, vcc")
    a("v_cmp_eq_u32 vcc, 3, v4"); a.nop(2); a("v_cndmask_b32 v9, v9, v11, vcc")
    for i in range(4): a(f"v_mov_b32 v{12+i}, 0x3f803f80")
    a("v_and_b32 v4, 15, v2"); a("v_lshlrev_b32 v4, 7, v4"); a("v_lshrrev_b32 v5, 4, v2"); a("v_lshl_add_u32 v4, v5, 5, v4")
    a("s_mul_i32 s68, s64, 17408"); a("s_lshl_b32 s69, s65, 13"); a("s_add_u32 s69, s69, s68"); a("v_add_u32 v4, s69, v4")
    a("s_lshl_b32 s69, s65, 9"); a("s_add_u32 s69, s69, s68"); a("s_add_u32 s69, s69, 16384")
    a("v_lshlrev_b32 v5, 5, v5"); a("v_add_u32 v5, s69, v5")
    for ui in range(4):
        a(f"ds_read_b64_tr_b16 v[6:7], v3 offset:{ui*512}"); a("s_waitcnt lgkmcnt(0)")
        for b in range(2): phi_block(a, accreg(0, ui, b), 6, 60, 48 + b * 4, 50 + b * 4)
        a.nop(2)
        for b in range(2):
            for sg in range(2):
                a(f"v_mfma_f32_16x16x16_bf16 {vr(96+(b*2+sg)*4,4)}, {vr(48+b*4+sg*2,2)}, v[8:9], 0")
        for b in range(2):
            va = accreg(1, ui, b)
            a(f"v_cvt_pk_bf16_f32 v{92+2*b}, v{va}, v{va+1}"); a(f"v_cvt_pk_bf16_f32 v{93+2*b}, v{va+2}, v{va+3}")
        a.nop(8)
        for b in range(2):
            for sg in range(2):
                t = 96 + (b * 2 + sg) * 4
                a(f"v_cvt_pk_bf16_f32 v{84+sg*4+2*b}, v{t}, v{t+1}"); a(f"v_cvt_pk_bf16_f32 v{85+sg*4+2*b}, v{t+2}, v{t+3}")
        if DBG:
            a("s_lshl_b32 s70, s63, 2"); a("s_add_u32 s70, s70, s64"); a("s_lshl_b32 s70, s70, 5")
            a("s_lshl_b32 s71, s62, 3"); a("s_add_u32 s70, s70, s71"); a("s_lshl_b32 s71, s65, 2"); a("s_add_u32 s70, s70, s71")
            a(f"s_add_u32 s70, s70, {ui}"); a("s_lshl_b32 s70, s70, 10"); a(f"s_add_u32 s70, s70, {13*MB}")
            a("v_lshlrev_b32 v128, 4, v2"); a("v_add_u32 v128, s70, v128")
            a("buffer_store_dwordx4 v[92:95], v128, s[24:27], 0 offen")
        a.nop(2)
        for sg in range(2):
            a(f"v_mfma_f32_16x16x32_bf16 {vr(112+sg*4,4)}, {vr(84+sg*4,4)}, v[92:95], 0")
            a(f"v_mfma_f32_16x16x32_bf16 {vr(120+sg*4,4)}, {vr(84+sg*4,4)}, v[12:15], 0")
        a.nop(8)
        for sg in range(2):
            a(f"ds_write_b128 v4, {vr(112+sg*4,4)} offset:{ui*2048+sg*16}")
            a(f"ds_write_b128 v5, {vr(120+sg*4,4)} offset:{ui*128+sg*16}")
    a("s_waitcnt lgkmcnt(0)"); a("s_barrier")
    a("v_lshlrev_b32 v3, 2, v0"); a("v_add_u32 v5, 34816, v3")
    a("s_lshl_b32 s68, s62, 14"); a(f"s_add_u32 s68, s68, {KV_OFF}"); a("v_add_u32 v4, s68, v3")
    for i in range(8):
        for w in range(4): a(f"ds_read_b32 v{8+w}, v{3+2*(w>>1)} offset:{(w&1)*17408+i*2048}")
        a("s_waitcnt lgkmcnt(0)")
        a("v_add_f32 v8, v8, v9"); a("v_add_f32 v10, v10, v11"); a("v_add_f32 v8, v8, v10")
        a(f"s_movk_i32 s70, {i*2048}")
        a(f"buffer_atomic_add_f32 v8, v4, s[24:27], s70 offen")
    a("s_cmp_ge_u32 s14, 4"); a("s_cbranch_scc1 k1_end")
    a("s_lshl_b32 s68, s62, 10"); a(f"s_add_u32 s68, s68, {Z_OFF}"); a("v_add_u32 v4, s68, v3")
    for w in range(4): a(f"ds_read_b32 v{8+w}, v{3+2*(w>>1)} offset:{(w&1)*17408+16384}")
    a("s_waitcnt lgkmcnt(0)")
    a("v_add_f32 v8, v8, v9"); a("v_add_f32 v10, v10, v11"); a("v_add_f32 v8, v8, v10")
    a("buffer_atomic_add_f32 v8, v4, s[24:27], 0 offen")
    a("s_branch k1_end")
    a.lab("k1_gu_epi")
    a.nop(8)
    a("v_and_b32 v4, 15, v2"); a("v_add_u32 v4, s73, v4"); a("s_movk_i32 s68, 2752"); a("v_mul_lo_u32 v4, v4, s68")
    a("v_lshrrev_b32 v5, 4, v2"); a("v_lshl_add_u32 v4, v5, 3, v4")
    a("s_lshl_b32 s69, s65, 7"); a("s_add_u32 s69, s69, s58")
    a(f"s_add_u32 s68, s69, {H_OFF}"); a("v_add_u32 v4, s68, v4"); a(f"v_add_u32 v5, {16*2752}, v4")
    for ui in range(5):
        uu = 8 if ui == 4 else ui
        if ui == 4: a("s_cmp_eq_u32 s65, 1"); a("s_cbranch_scc1 k1_end")
        a(f"s_add_u32 s70, s69, {uu*32}"); a("s_cmp_ge_u32 s70, 2752"); a(f"s_cbranch_scc1 k1_gu_skip{ui}")
        for b in range(2):
            g = accreg(0, ui, b); u = accreg(1, ui, b); T = 48 + b * 16
            rb_pair(a, g, g + 1, T); rb_pair(a, g + 2, g + 3, T)
            rb_pair(a, u, u + 1, T); rb_pair(a, u + 2, u + 3, T)
            for i in range(4): a(f"v_mul_f32 v{T+i}, s61, v{g+i}")
            for i in range(4): a(f"v_exp_f32 v{T+i}, -v{T+i}")
            a.nop(1)
            for i in range(4): a(f"v_add_f32 v{T+i}, 1.0, v{T+i}")
            for i in range(4): a(f"v_rcp_f32 v{T+i}, v{T+i}")
            a.nop(1)
            for i in range(4): a(f"v_mul_f32 v{T+i}, v{T+i}, v{g+i}")
            rb_pair(a, T, T + 1, T + 4); rb_pair(a, T + 2, T + 3, T + 4)
            for i in range(4): a(f"v_mul_f32 v{T+i}, v{T+i}, v{u+i}")
            a(f"v_cvt_pk_bf16_f32 v{T+8}, v{T}, v{T+1}"); a(f"v_cvt_pk_bf16_f32 v{T+9}, v{T+2}, v{T+3}")
            a(f"buffer_store_dwordx2 {vr(T+8,2)}, v{4+b}, s[24:27], 0 offen offset:{uu*32}")
        a.lab(f"k1_gu_skip{ui}")
    a.lab("k1_end"); a("s_endpgm")

def main():
    a = Asm()
    hdr = open(f"cdna_kernels/{NAME}.s.ref").read().split("; Override launch")[0]
    launches = ["; @launch kernel=k0_kernel grid=(512,1,1) block=(64,1,1) lds=0",
                f"; @launch kernel=k1_kernel grid=(256,1,1) block=(512,1,1) lds={K1_LDS}"]
    extra = []
    try:
        import gen3
        launches.append(gen3.LAUNCH)
        extra.append(gen3)
    except ImportError:
        pass
    out = hdr + "\n".join(launches) + "\n" + '.amdgcn_target "amdgcn-amd-amdhsa--gfx950"\n.text\n'
    gen_k0(a); gen_k1(a)
    for m in extra: m.gen(a)
    out += "\n".join(a.l) + "\n" + '.section .rodata,"a"\n' + kdesc("k0_kernel", 128) + kdesc("k1_kernel", 256)
    for m in extra: out += m.desc()
    dst = sys.argv[1] if len(sys.argv) > 1 else f"cdna_kernels/{NAME}.s"
    open(dst, "w").write(out)
main()
```

```python
from __main__ import stamp, stamp_out, STAMP, vr, kdesc, rb_pair, MB, H_OFF, PHI_OFF, KV_OFF, Z_OFF, WS_SIZE, LOG2E
RED = 17408
K3_LDS = 8 * RED
LAUNCH = f"; @launch kernel=k3_kernel grid=(256,1,1) block=(512,1,1) lds={K3_LDS}"
def desc(): return kdesc("k3_kernel", 256)
ACC = 16
def acc(u, b): return ACC + (u * 4 + b) * 4
BF = 144

def gen(a):
    a.l.append(".p2align 8"); a.l.append(".globl k3_kernel"); a.l.append(".type k3_kernel,@function"); a.lab("k3_kernel")
    a("s_cmp_ge_u32 s2, 256"); a("s_cbranch_scc1 k3_end")
    stamp(a, 0)
    if STAMP: a("s_memrealtime s[94:95]")
    a("s_load_dwordx2 s[4:5], s[0:1], 0")
    a("s_load_dwordx2 s[6:7], s[0:1], 24")
    a("s_load_dwordx4 s[8:11], s[0:1], 56")
    a("s_load_dwordx2 s[12:13], s[0:1], 80")
    a("v_lshrrev_b32 v1, 6, v0"); a("v_and_b32 v2, 63, v0"); a.nop(1)
    a("v_readfirstlane_b32 s14, v1")
    a("s_and_b32 s3, s2, 7"); a("s_lshr_b32 s15, s2, 3")
    a("s_lshr_b32 s62, s15, 3"); a("s_lshl_b32 s3, s3, 2"); a("s_add_u32 s62, s62, s3"); a("s_lshl_b32 s62, s62, 6")
    a("s_and_b32 s63, s15, 7"); a("s_lshl_b32 s63, s63, 7")
    a(f"s_mov_b32 s61, {LOG2E:#x}")
    a("s_waitcnt lgkmcnt(0)")
    a.srd(16, 4, 5, 2 * MB); a.srd(20, 6, 7, 512 * 1024); a.srd(24, 12, 13, WS_SIZE)
    a.srd(28, 8, 9, 1376 * 1024); a.srd(32, 10, 11, 2 * MB)
    a("v_lshrrev_b32 v3, 3, v0"); a("v_add_u32 v3, s62, v3"); a("v_lshlrev_b32 v3, 10, v3")
    a("v_and_b32 v4, 7, v0"); a("v_lshl_add_u32 v3, v4, 4, v3"); a("v_add_u32 v3, s63, v3")
    a("buffer_load_dwordx4 v[12:15], v3, s[16:19], 0 offen")
    a("v_lshrrev_b32 v8, 2, v2"); a("v_lshlrev_b32 v8, 7, v8"); a("v_and_b32 v9, 3, v2"); a("v_lshl_add_u32 v8, v9, 3, v8")
    a("s_lshl_b32 s64, s14, 14"); a("v_add_u32 v8, s64, v8")
    a("v_bfe_u32 v9, v2, 3, 2")
    for u in range(4):
        a(f"v_xor_b32 v10, {u}, v9"); a(f"v_lshl_add_u32 v{4+u}, v10, 5, v8")
    a("v_bfe_u32 v8, v2, 1, 2"); a("v_bfe_u32 v9, v2, 4, 2"); a("v_xor_b32 v8, v8, v9"); a("v_lshlrev_b32 v8, 5, v8")
    a("v_and_b32 v9, 1, v2"); a("v_lshl_add_u32 v8, v9, 4, v8"); a("v_add_u32 v8, s63, v8")
    a("s_cmp_lt_u32 s14, 4"); a("s_cbranch_scc1 k3_swave")
    a("s_sub_u32 s69, s14, 4")
    a("v_lshrrev_b32 v9, 5, v2"); a("v_lshlrev_b32 v9, 3, v9"); a("v_bfe_u32 v10, v2, 3, 2"); a("v_add_u32 v9, v9, v10")
    a("v_lshl_add_u32 v8, v9, 10, v8")
    a("s_mul_i32 s65, s69, 11")
    a("v_lshlrev_b32 v9, 4, v2")
    a("s_lshr_b32 s66, s62, 4"); a("s_mul_i32 s66, s66, 44032"); a("s_lshl_b32 s67, s65, 10"); a("s_add_u32 s66, s66, s67")
    a(f"s_add_u32 s66, s66, {H_OFF}"); a("v_add_u32 v160, s66, v9")
    for b in range(1, 4): a(f"v_add_u32 v{160+b}, {b*44032}, v160")
    a("s_lshl_b32 s65, s65, 15")
    AR = 80
    def oload(t):
        a(f"s_movk_i32 s67, {t*1024}")
        for b in range(4):
            a(f"buffer_load_dwordx4 {vr(AR+(t%4)*16+b*4,4)}, v{160+b}, s[24:27], s67 offen")
        for q, dl in enumerate((0, 16, 4, 20)):
            a(f"s_add_u32 m0, s64, {(t%4)*4096+q*1024}")
            a(f"s_add_u32 s66, s65, {t*32768+dl*1024}")
            a(f"buffer_load_dwordx4 v8, s[28:31], s66 offen lds")
    NST = 11
    for t in range(3): oload(t)
    for t in range(NST):
        rem = min(2, NST - 1 - t)
        a(f"s_waitcnt vmcnt({8*rem})")
        if t == 0: stamp(a, 4)
        if t == 5: stamp(a, 5)
        if t == NST - 1: a("s_cmp_eq_u32 s14, 7"); a("s_cbranch_scc1 k3_red")
        for u in range(4):
            for j in range(2):
                a(f"ds_read_b64_tr_b16 {vr(BF+u*4+2*j,2)}, v{4+u} offset:{(t%4)*4096+j*2048}")
        if t + 3 < NST: oload(t + 3)
        for u in range(4):
            a(f"s_waitcnt lgkmcnt({6-2*u})")
            for b in range(4):
                c = "0" if t == 0 else vr(acc(u, b), 4)
                a(f"v_mfma_f32_16x16x32_bf16 {vr(acc(u,b),4)}, {vr(BF+u*4,4)}, {vr(AR+(t%4)*16+b*4,4)}, {c}")
    a("s_branch k3_red")
    a.lab("k3_swave")
    a("v_lshrrev_b32 v9, 3, v2"); a("v_lshl_add_u32 v8, v9, 10, v8")
    a("s_mov_b32 s65, s14")
    a("s_lshl_b32 s66, s65, 17")
    for p in range(4):
        for q in range(4):
            a(f"s_add_u32 m0, s64, {p*4096+q*1024}")
            a(f"s_add_u32 s67, s66, {p*32768+q*8192}")
            a(f"buffer_load_dwordx4 v8, s[20:23], s67 offen lds")
    a("v_lshlrev_b32 v9, 4, v2"); a("v_lshrrev_b32 v10, 4, v2")
    a("s_lshl_b32 s67, s65, 13"); a("s_lshl_b32 s68, s62, 11"); a("s_add_u32 s67, s67, s68"); a(f"s_add_u32 s67, s67, {PHI_OFF}"); a("v_add_u32 v240, s67, v9")
    for b in range(1, 4): a(f"v_add_u32 v{240+b}, {b*32768}, v240")
    a("v_and_b32 v9, 15, v2"); a("v_lshlrev_b32 v9, 7, v9"); a("v_lshl_add_u32 v9, v10, 5, v9")
    a("s_lshl_b32 s67, s65, 14"); a(f"s_add_u32 s67, s67, {KV_OFF}"); a("v_add_u32 v244, s67, v9")
    a("s_lshl_b32 s67, s65, 10"); a(f"s_add_u32 s67, s67, {Z_OFF}"); a("v_lshlrev_b32 v9, 5, v10"); a("v_add_u32 v245, s67, v9")
    LB = 80
    def sload(p):
        base = LB + (p % 2) * 64
        for hh in range(2):
            h = 2 * p + hh
            a(f"s_movk_i32 s67, {h*1024}")
            for b in range(4): a(f"buffer_load_dwordx4 {vr(base+hh*32+b*4,4)}, v{240+b}, s[24:27], s67 offen")
            a(f"s_movk_i32 s67, {h*2048}")
            for q in range(2): a(f"buffer_load_dwordx4 {vr(base+hh*32+16+q*4,4)}, v244, s[24:27], s67 offen offset:{q*16}")
            for q in range(2): a(f"buffer_load_dwordx4 {vr(base+hh*32+24+q*4,4)}, v245, s[24:27], 0 offen offset:{h*128+q*16}")
    sload(0); sload(1)
    OB = 208
    for p in range(4):
        base = LB + (p % 2) * 64
        a(f"s_waitcnt vmcnt({16 if p < 3 else 0})")
        if p == 0: stamp(a, 4)
        if p == 2: stamp(a, 5)
        for hh in range(2):
            hb = base + hh * 32
            for i in range(4): a(f"v_cvt_pk_bf16_f32 v{224+hh*8+i}, v{hb+16+2*i}, v{hb+17+2*i}")
            for i in range(4): a(f"v_cvt_pk_bf16_f32 v{228+hh*8+i}, v{hb+24+2*i}, v{hb+25+2*i}")
        a.nop(2)
        NT, DT = base + 16, base + 48
        for hh in range(2):
            hb = base + hh * 32
            for b in range(4):
                a(f"v_mfma_f32_16x16x32_bf16 {vr(NT+b*4,4)}, {vr(224+hh*8,4)}, {vr(hb+b*4,4)}, 0")
                a(f"v_mfma_f32_16x16x32_bf16 {vr(DT+b*4,4)}, {vr(228+hh*8,4)}, {vr(hb+b*4,4)}, 0")
            a.nop(8)
            for b in range(4): a(f"v_cvt_pk_bf16_f32 v{DT+b*4}, v{DT+b*4}, v{DT+b*4}")
            for b in range(4): a(f"v_cvt_pk_bf16_f32 v{DT+b*4+1}, v{NT+b*4}, v{NT+b*4+1}"); a(f"v_cvt_pk_bf16_f32 v{DT+b*4+2}, v{NT+b*4+2}, v{NT+b*4+3}")
            for b in range(4): a(f"v_lshlrev_b32 v{DT+b*4}, 16, v{DT+b*4}")
            for b in range(4): a(f"v_add_f32 v{DT+b*4}, 0x358637bd, v{DT+b*4}")
            for b in range(4): a(f"v_cvt_pk_bf16_f32 v{DT+b*4}, v{DT+b*4}, v{DT+b*4}")
            for b in range(4): a(f"v_lshlrev_b32 v{DT+b*4}, 16, v{DT+b*4}")
            for b in range(4): a(f"v_rcp_f32 v{DT+b*4}, v{DT+b*4}")
            for b in range(4):
                a(f"v_lshlrev_b32 v{NT+b*4}, 16, v{DT+b*4+1}"); a(f"v_and_b32 v{NT+b*4+1}, 0xffff0000, v{DT+b*4+1}")
                a(f"v_lshlrev_b32 v{NT+b*4+2}, 16, v{DT+b*4+2}"); a(f"v_and_b32 v{NT+b*4+3}, 0xffff0000, v{DT+b*4+2}")
            for b in range(4):
                for i in range(4): a(f"v_mul_f32 v{NT+b*4+i}, v{NT+b*4+i}, v{DT+b*4}")
            for b in range(4):
                a(f"v_cvt_pk_bf16_f32 v{OB+b*4+hh*2}, v{NT+b*4}, v{NT+b*4+1}"); a(f"v_cvt_pk_bf16_f32 v{OB+b*4+hh*2+1}, v{NT+b*4+2}, v{NT+b*4+3}")
        if p + 2 < 4: sload(p + 2)
        for u in range(4):
            for j in range(2):
                a(f"ds_read_b64_tr_b16 {vr(BF2+u*4+2*j,2)}, v{4+u} offset:{p*4096+j*2048}")
        for u in range(4):
            a(f"s_waitcnt lgkmcnt({6-2*u})")
            for b in range(4):
                c = "0" if p == 0 else vr(acc(u, b), 4)
                a(f"v_mfma_f32_16x16x32_bf16 {vr(acc(u,b),4)}, {vr(BF2+u*4,4)}, {vr(OB+b*4,4)}, {c}")
    a.lab("k3_red")
    stamp(a, 1)
    a.nop(8)
    a("s_barrier")
    stamp(a, 2)
    a("v_and_b32 v8, 15, v2"); a("v_mul_u32_u24 v8, 272, v8"); a("v_lshrrev_b32 v9, 4, v2"); a("v_lshl_add_u32 v8, v9, 4, v8")
    a("s_xor_b32 s66, s14, 4"); a(f"s_mul_i32 s66, s66, {RED}"); a("v_add_u32 v8, s66, v8")
    for u in range(4):
        for b in range(4):
            a(f"ds_write_b128 v8, {vr(acc(u,b),4)} offset:{b*4352+u*64}")
    a("s_waitcnt lgkmcnt(0)"); a("s_barrier")
    a("v_lshrrev_b32 v8, 3, v0"); a("v_mul_u32_u24 v8, 272, v8"); a("v_and_b32 v9, 7, v0"); a("v_lshl_add_u32 v8, v9, 5, v8")
    a(f"v_add_u32 v9, {4*RED}, v8")
    for w in range(8):
        for q in range(2):
            a(f"ds_read_b128 {vr(16+w*8+q*4,4)}, v{8+(w>>2)} offset:{(w&3)*RED+q*16}")
    a("s_waitcnt lgkmcnt(0)")
    stamp(a, 3)
    for i in range(8):
        a(f"v_add_f32 v{16+i}, v{16+i}, v{24+i}"); a(f"v_add_f32 v{32+i}, v{32+i}, v{40+i}")
        a(f"v_add_f32 v{48+i}, v{48+i}, v{56+i}"); a(f"v_add_f32 v{64+i}, v{64+i}, v{72+i}")
    for i in range(8):
        a(f"v_add_f32 v{16+i}, v{16+i}, v{32+i}"); a(f"v_add_f32 v{48+i}, v{48+i}, v{64+i}")
    for i in range(0, 8, 2): rb_pair(a, 16 + i, 17 + i, 80); rb_pair(a, 48 + i, 49 + i, 80)
    for i in range(8): a(f"v_mul_f32 v{32+i}, s61, v{16+i}")
    for i in range(8): a(f"v_exp_f32 v{32+i}, -v{32+i}")
    a.nop(1)
    for i in range(8): a(f"v_add_f32 v{32+i}, 1.0, v{32+i}")
    for i in range(8): a(f"v_rcp_f32 v{32+i}, v{32+i}")
    a.nop(1)
    for i in range(8): a(f"v_mul_f32 v{32+i}, v{32+i}, v{16+i}")
    for i in range(0, 8, 2): rb_pair(a, 32 + i, 33 + i, 80)
    for i in range(8): a(f"v_mul_f32 v{32+i}, v{32+i}, v{48+i}")
    for i in range(0, 8, 2): rb_pair(a, 32 + i, 33 + i, 80)
    a("s_waitcnt vmcnt(0)")
    for i in range(4):
        a(f"v_lshlrev_b32 v{64+2*i}, 16, v{12+i}"); a(f"v_and_b32 v{65+2*i}, 0xffff0000, v{12+i}")
    for i in range(8): a(f"v_add_f32 v{32+i}, v{32+i}, v{64+i}")
    for i in range(4): a(f"v_cvt_pk_bf16_f32 v{12+i}, v{32+2*i}, v{33+2*i}")
    a("buffer_store_dwordx4 v[12:15], v3, s[32:35], 0 offen")
    if STAMP:
        stamp(a, 6); a("s_waitcnt vmcnt(0)"); stamp(a, 7); a("s_mov_b64 s[92:93], s[94:95]"); stamp_out(a, 24, 9, 1)
    a.lab("k3_end"); a("s_endpgm")
BF2 = 224
```

```python
import sys, re, os
NAME = "recurrent_scan__linear_kernel_hedgehog__glu_gated_swiglu__prompt"
MB = 1 << 20
XN_OFF, H_OFF, PHI_OFF, KV_OFF = 0, 2 * MB, 8 * MB, 12 * MB
Z_OFF = KV_OFF + 65536
WS_SIZE = 16 * MB
LOG2E = 0x3fb8aa3b
import os
DBG = bool(os.environ.get('GDBG'))

class Asm:
    def __init__(s): s.l = []
    def __call__(s, t):
        m = re.search(r"offset:(\d+)", t)
        if m and t.startswith("buffer_"): assert int(m.group(1)) <= 4095, t
        if m and t.startswith("ds_"): assert int(m.group(1)) <= 65535, t
        s.l.append("    " + t)
    def lab(s, t): s.l.append(t + ":")
    def nop(s, n):
        while n > 0:
            k = min(n, 16); s(f"s_nop {k-1}"); n -= k
    def srd(s, d, lo, hi, size):
        s(f"s_mov_b32 s{d}, s{lo}"); s(f"s_and_b32 s{d+1}, s{hi}, 0xffff")
        s(f"s_mov_b32 s{d+2}, {size}"); s(f"s_mov_b32 s{d+3}, 0x00020000")

STAMP = bool(os.environ.get('STAMP'))
def stamp(a, i):
    if STAMP:
        a(f"s_memtime s[{76+2*i}:{77+2*i}]")
def stamp_out(a, srd, n, tag):
    if not STAMP: return
    a(f"s_memrealtime s[{76+2*n}:{77+2*n}]")
    a("s_waitcnt lgkmcnt(0)")
    a("s_lshl_b32 s74, s2, 3"); a("s_add_u32 s74, s74, s14"); a("s_lshl_b32 s74, s74, 7"); a(f"s_add_u32 s74, s74, {14*MB + tag*(1<<19)}")
    a("v_mov_b32 v250, s74")
    for i in range(2 * (n + 1)):
        a(f"v_mov_b32 v251, s{76+i}"); a(f"buffer_store_dword v251, v250, s[{srd}:{srd+3}], 0 offen offset:{4*i}")
def vr(a, n): return f"v[{a}:{a+n-1}]"

def kdesc(name, vgpr, sgpr=100):
    return f""".p2align 6
.amdhsa_kernel {name}
  .amdhsa_next_free_vgpr {vgpr}
  .amdhsa_next_free_sgpr {sgpr}
  .amdhsa_accum_offset {(vgpr+3)//4*4}
  .amdhsa_group_segment_fixed_size 0
  .amdhsa_kernarg_size 88
  .amdhsa_user_sgpr_count 2
  .amdhsa_user_sgpr_kernarg_segment_ptr 1
  .amdhsa_system_sgpr_workgroup_id_x 1
.end_amdhsa_kernel
"""

def gen_k0(a):
    a.l.append(".p2align 8"); a.l.append(".globl k0_kernel"); a.l.append(".type k0_kernel,@function"); a.lab("k0_kernel")
    a("s_cmp_ge_u32 s2, 512"); a("s_cbranch_scc1 k0_end")
    a("s_load_dwordx2 s[4:5], s[0:1], 0"); a("s_load_dwordx2 s[6:7], s[0:1], 80")
    a("v_and_b32 v1, 15, v0"); a("v_lshrrev_b32 v2, 4, v0")
    a("s_lshl_b32 s3, s2, 12")
    a("v_lshlrev_b32 v3, 10, v2"); a("v_lshl_add_u32 v3, v1, 4, v3"); a("v_add_u32 v3, s3, v3")
    a("s_waitcnt lgkmcnt(0)")
    a.srd(8, 4, 5, 2 * MB); a.srd(12, 6, 7, WS_SIZE)
    for c in range(4): a(f"buffer_load_dwordx4 {vr(4+4*c,4)}, v3, s[8:11], 0 offen offset:{256*c}")
    a("s_cmp_ge_u32 s2, 68"); a("s_cbranch_scc1 k0_nz")
    for i in range(4): a(f"v_mov_b32 v{20+i}, 0")
    a("s_lshl_b32 s16, s2, 10"); a(f"s_add_u32 s16, s16, {KV_OFF}")
    a("v_lshlrev_b32 v24, 4, v0"); a("v_add_u32 v24, s16, v24")
    a("buffer_store_dwordx4 v[20:23], v24, s[12:15], 0 offen")
    a.lab("k0_nz")
    a("s_waitcnt vmcnt(0)")
    for i in range(16):
        a(f"v_lshlrev_b32 v{32+2*i}, 16, v{4+i}"); a(f"v_and_b32 v{33+2*i}, 0xffff0000, v{4+i}")
    for i in range(16): a(f"v_add_f32 v{64+i}, v{32+2*i}, v{33+2*i}")
    n = 16
    while n > 1:
        for i in range(n // 2): a(f"v_add_f32 v{64+i}, v{64+i}, v{64+i+n//2}")
        n //= 2
    def red16(r):
        for sh in (8, 4, 2, 1):
            a.nop(2); a(f"v_add_f32_dpp v{r}, v{r}, v{r} row_ror:{sh} row_mask:0xf bank_mask:0xf")
    red16(64)
    a("v_mul_f32 v64, 0x3b000000, v64")
    a("v_cvt_pk_bf16_f32 v65, v64, v64"); a("v_lshlrev_b32 v65, 16, v65")
    for i in range(32): a(f"v_sub_f32 v{80+i}, v{32+i}, v64")
    for i in range(16): a(f"v_mul_f32 v{112+i}, v{80+2*i}, v{80+2*i}")
    for i in range(16): a(f"v_fmac_f32 v{112+i}, v{81+2*i}, v{81+2*i}")
    n = 16
    while n > 1:
        for i in range(n // 2): a(f"v_add_f32 v{112+i}, v{112+i}, v{112+i+n//2}")
        n //= 2
    red16(112)
    a("v_mul_f32 v66, 0x3b000000, v112")
    a("v_cvt_pk_bf16_f32 v66, v66, v66"); a("v_lshlrev_b32 v66, 16, v66")
    a("v_add_f32 v66, 0x3727c5ac, v66")
    a("v_cvt_pk_bf16_f32 v66, v66, v66"); a("v_lshlrev_b32 v66, 16, v66")
    a("v_sqrt_f32 v66, v66"); a.nop(1)
    a("v_cvt_pk_bf16_f32 v66, v66, v66"); a("v_lshlrev_b32 v66, 16, v66")
    a("v_rcp_f32 v66, v66"); a.nop(1)
    for i in range(32): a(f"v_sub_f32 v{80+i}, v{32+i}, v65")
    for i in range(16): a(f"v_cvt_pk_bf16_f32 v{112+i}, v{80+2*i}, v{81+2*i}")
    for i in range(16):
        a(f"v_lshlrev_b32 v{80+2*i}, 16, v{112+i}"); a(f"v_and_b32 v{81+2*i}, 0xffff0000, v{112+i}")
    for i in range(32): a(f"v_mul_f32 v{80+i}, v{80+i}, v66")
    for i in range(16): a(f"v_cvt_pk_bf16_f32 v{4+i}, v{80+2*i}, v{81+2*i}")
    a("s_lshr_b32 s16, s2, 2"); a("s_lshl_b32 s16, s16, 14"); a("s_and_b32 s17, s2, 3"); a("s_lshl_b32 s17, s17, 6"); a("s_add_u32 s16, s16, s17")
    a("v_lshrrev_b32 v20, 2, v1"); a("v_lshlrev_b32 v20, 10, v20"); a("v_and_b32 v21, 3, v1"); a("v_lshl_add_u32 v20, v21, 8, v20")
    a("v_lshl_add_u32 v20, v2, 4, v20"); a("v_add_u32 v20, s16, v20")
    for c in range(4):
        a(f"s_movk_i32 s17, {4096*c}")
        a(f"buffer_store_dwordx4 {vr(4+4*c,4)}, v20, s[12:15], s17 offen")
    a.lab("k0_end"); a("s_endpgm")

WSTG = 36864
STG = WSTG + 16384
NSLOT = 3
WPHI_LDS = STG * 2
K1_LDS = STG * NSLOT
A0, BR, ACC = 48, 32, 176
def areg(b, kb): return A0 + (b * 2 + (kb & 1)) * 4
def accreg(R, ui, b): return ACC + ((R * 5 + ui) * 2 + b) * 4

def k1_dma(a, stage, nd):
    sl = stage % NSLOT
    for i in range(nd):
        a(f"s_add_u32 m0, s{52+i}, {sl*STG}")
        a(f"s_mul_i32 s60, s57, {stage*64}")
        a(f"buffer_load_dwordx4 v{20+i}, s[{32+4*i}:{35+4*i}], s60 offen lds")
    a(f"s_add_u32 m0, s75, {sl*STG}")
    a(f"s_movk_i32 s60, {stage*2048}")
    a("buffer_load_dwordx4 v26, s[24:27], s60 offen lds")
    a("buffer_load_dwordx4 v26, s[24:27], s60 offen offset:1024 lds")

def k1_mainloop(a, tag, NU, nd, transp):
    items = [(kb, R, ui) for kb in range(2) for R in range(2) for ui in range(NU)]
    def rd(stage, it):
        kb, R, ui = items[it]
        u = 8 if ui == 4 else ui
        off = kb * 18432 + R * 9216 + u * 32
        br = BR + (it % 4) * 4
        a(f"ds_read_b64_tr_b16 {vr(br,2)}, v{16+stage%NSLOT} offset:{off}")
        a(f"ds_read_b64_tr_b16 {vr(br+2,2)}, v{16+stage%NSLOT} offset:{off+4608}")
    for st in range(8):
        rem = min(1, 7 - st)
        a(f"s_waitcnt vmcnt({rem*(nd+2)})"); a("s_barrier")
        if st == 0: stamp(a, 1)
        if st == 4: stamp(a, 2)
        sl = st % NSLOT
        for kb in range(2):
            for b in range(2):
                a(f"ds_read_b128 {vr(areg(b,kb),4)}, v{27 if sl < 2 else 28} offset:{(sl if sl < 2 else 0)*STG+b*2048+kb*1024}")
        n = len(items)
        for it in range(3): rd(st, it)
        if st + 2 < 8: k1_dma(a, st + 2, nd)
        if st == 6:
            a("s_mov_b32 m0, s68"); a.nop(1)
            a("buffer_load_dwordx4 v9, s[28:31], 0 offen lds")
        for it in range(n):
            if it + 3 < n: rd(st, it + 3)
            ahead = min(3, n - 1 - it)
            a(f"s_waitcnt lgkmcnt({2*ahead})")
            kb, R, ui = items[it]
            br = BR + (it % 4) * 4
            for b in range(2):
                ac = accreg(R, ui, b); ar = areg(b, kb)
                c = "0" if (st == 0 and kb == 0) else vr(ac, 4)
                if transp[R]: a(f"v_mfma_f32_16x16x32_bf16 {vr(ac,4)}, {vr(br,4)}, {vr(ar,4)}, {c}")
                else: a(f"v_mfma_f32_16x16x32_bf16 {vr(ac,4)}, {vr(ar,4)}, {vr(br,4)}, {c}")

def rb_pair(a, x0, x1, t):
    a(f"v_cvt_pk_bf16_f32 v{t}, v{x0}, v{x1}")
    a(f"v_lshlrev_b32 v{x0}, 16, v{t}"); a(f"v_and_b32 v{x1}, 0xffff0000, v{t}")

def phi_block(a, ac, wp, T, outp, outm):
    t0 = T; p = T + 2; e = T + 6; f = T + 10; mx = T + 14; nm = T + 15; c = T + 16; d = T + 17
    a(f"v_cvt_pk_bf16_f32 v{t0}, v{ac}, v{ac+1}"); a(f"v_cvt_pk_bf16_f32 v{t0+1}, v{ac+2}, v{ac+3}")
    a.nop(2)
    a(f"v_mfma_f32_16x16x16_bf16 {vr(p,4)}, {vr(wp,2)}, {vr(t0,2)}, 0")
    a.nop(8)
    rb_pair(a, p, p + 1, t0); rb_pair(a, p + 2, p + 3, t0 + 1)
    a(f"v_max3_f32 v{mx}, v{p}, v{p+1}, v{p+2}"); a(f"v_max3_f32 v{nm}, -v{p}, -v{p+1}, -v{p+2}")
    a(f"v_max_f32 v{mx}, v{mx}, v{p+3}"); a(f"v_max_f32_e64 v{nm}, v{nm}, -v{p+3}")
    def cross(x, y, op):
        a.nop(2); a(f"v_permlane32_swap_b32 v{x}, v{y}")
        a(f"{op} v{c}, v{x}, v{y}"); a(f"v_mov_b32 v{d}, v{c}")
        a.nop(2); a(f"v_permlane16_swap_b32 v{c}, v{d}")
        a(f"{op} v{x}, v{c}, v{d}"); a(f"v_mov_b32 v{y}, v{x}")
        a.nop(2); a(f"v_permlane32_swap_b32 v{x}, v{y}")
    cross(mx, nm, "v_max_f32")
    a(f"v_mul_f32 v{mx}, s61, v{mx}"); a(f"v_mul_f32 v{nm}, s61, v{nm}")
    for i in range(4):
        a(f"v_fma_f32 v{e+i}, v{p+i}, s61, -v{mx}"); a(f"v_fma_f32 v{f+i}, -v{p+i}, s61, -v{nm}")
    for i in range(4):
        a(f"v_exp_f32 v{e+i}, v{e+i}"); a(f"v_exp_f32 v{f+i}, v{f+i}")
    a.nop(1)
    a(f"v_add_f32 v{mx}, v{e}, v{e+1}"); a(f"v_add_f32 v{nm}, v{f}, v{f+1}")
    a(f"v_add_f32 v{c}, v{e+2}, v{e+3}"); a(f"v_add_f32 v{d}, v{f+2}, v{f+3}")
    a(f"v_add_f32 v{mx}, v{mx}, v{c}"); a(f"v_add_f32 v{nm}, v{nm}, v{d}")
    cross(mx, nm, "v_add_f32")
    a(f"v_rcp_f32 v{mx}, v{mx}"); a(f"v_rcp_f32 v{nm}, v{nm}"); a.nop(1)
    for i in range(4):
        a(f"v_mul_f32 v{e+i}, v{e+i}, v{mx}"); a(f"v_mul_f32 v{f+i}, v{f+i}, v{nm}")
    a(f"v_cvt_pk_bf16_f32 v{outp}, v{e}, v{e+1}"); a(f"v_cvt_pk_bf16_f32 v{outp+1}, v{e+2}, v{e+3}")
    a(f"v_cvt_pk_bf16_f32 v{outm}, v{f}, v{f+1}"); a(f"v_cvt_pk_bf16_f32 v{outm+1}, v{f+2}, v{f+3}")

def phi_multi(a, blocks):
    n = len(blocks)
    B = [dict(ac=ac, wp=wp, t0=T, p=T+2, e=T+6, f=T+10, mx=T+14, nm=T+15, c=T+16, d=T+17, op=op, om=om) for ac, wp, T, op, om in blocks]
    def each(fn):
        for b in B: fn(b)
    each(lambda b: (a(f"v_cvt_pk_bf16_f32 v{b['t0']}, v{b['ac']}, v{b['ac']+1}"), a(f"v_cvt_pk_bf16_f32 v{b['t0']+1}, v{b['ac']+2}, v{b['ac']+3}")))
    a.nop(1)
    each(lambda b: a(f"v_mfma_f32_16x16x16_bf16 {vr(b['p'],4)}, {vr(b['wp'],2)}, {vr(b['t0'],2)}, 0"))
    a.nop(8)
    each(lambda b: (a(f"v_cvt_pk_bf16_f32 v{b['t0']}, v{b['p']}, v{b['p']+1}"), a(f"v_cvt_pk_bf16_f32 v{b['t0']+1}, v{b['p']+2}, v{b['p']+3}")))
    each(lambda b: (a(f"v_lshlrev_b32 v{b['p']}, 16, v{b['t0']}"), a(f"v_and_b32 v{b['p']+1}, 0xffff0000, v{b['t0']}"),
                    a(f"v_lshlrev_b32 v{b['p']+2}, 16, v{b['t0']+1}"), a(f"v_and_b32 v{b['p']+3}, 0xffff0000, v{b['t0']+1}")))
    each(lambda b: (a(f"v_max3_f32 v{b['mx']}, v{b['p']}, v{b['p']+1}, v{b['p']+2}"), a(f"v_max3_f32 v{b['nm']}, -v{b['p']}, -v{b['p']+1}, -v{b['p']+2}")))
    each(lambda b: (a(f"v_max_f32 v{b['mx']}, v{b['mx']}, v{b['p']+3}"), a(f"v_max_f32_e64 v{b['nm']}, v{b['nm']}, -v{b['p']+3}")))
    def cross(op):
        pad = max(0, 2 - (n - 1))
        a.nop(1 if n > 1 else 2)
        each(lambda b: a(f"v_permlane32_swap_b32 v{b['mx']}, v{b['nm']}"))
        each(lambda b: a(f"{op} v{b['c']}, v{b['mx']}, v{b['nm']}"))
        each(lambda b: a(f"v_mov_b32 v{b['d']}, v{b['c']}"))
        a.nop(pad)
        each(lambda b: a(f"v_permlane16_swap_b32 v{b['c']}, v{b['d']}"))
        each(lambda b: a(f"{op} v{b['mx']}, v{b['c']}, v{b['d']}"))
        each(lambda b: a(f"v_mov_b32 v{b['nm']}, v{b['mx']}"))
        a.nop(pad)
        each(lambda b: a(f"v_permlane32_swap_b32 v{b['mx']}, v{b['nm']}"))
    cross("v_max_f32")
    each(lambda b: (a(f"v_mul_f32 v{b['mx']}, s61, v{b['mx']}"), a(f"v_mul_f32 v{b['nm']}, s61, v{b['nm']}")))
    for i in range(4):
        each(lambda b: (a(f"v_fma_f32 v{b['e']+i}, v{b['p']+i}, s61, -v{b['mx']}"), a(f"v_fma_f32 v{b['f']+i}, -v{b['p']+i}, s61, -v{b['nm']}")))
    for i in range(4):
        each(lambda b: (a(f"v_exp_f32 v{b['e']+i}, v{b['e']+i}"), a(f"v_exp_f32 v{b['f']+i}, v{b['f']+i}")))
    a.nop(1)
    each(lambda b: (a(f"v_add_f32 v{b['mx']}, v{b['e']}, v{b['e']+1}"), a(f"v_add_f32 v{b['nm']}, v{b['f']}, v{b['f']+1}"),
                    a(f"v_add_f32 v{b['c']}, v{b['e']+2}, v{b['e']+3}"), a(f"v_add_f32 v{b['d']}, v{b['f']+2}, v{b['f']+3}")))
    each(lambda b: (a(f"v_add_f32 v{b['mx']}, v{b['mx']}, v{b['c']}"), a(f"v_add_f32 v{b['nm']}, v{b['nm']}, v{b['d']}")))
    cross("v_add_f32")
    each(lambda b: (a(f"v_rcp_f32 v{b['mx']}, v{b['mx']}"), a(f"v_rcp_f32 v{b['nm']}, v{b['nm']}")))
    a.nop(1)
    for i in range(4):
        each(lambda b: (a(f"v_mul_f32 v{b['e']+i}, v{b['e']+i}, v{b['mx']}"), a(f"v_mul_f32 v{b['f']+i}, v{b['f']+i}, v{b['nm']}")))
    each(lambda b: (a(f"v_cvt_pk_bf16_f32 v{b['op']}, v{b['e']}, v{b['e']+1}"), a(f"v_cvt_pk_bf16_f32 v{b['op']+1}, v{b['e']+2}, v{b['e']+3}"),
                    a(f"v_cvt_pk_bf16_f32 v{b['om']}, v{b['f']}, v{b['f']+1}"), a(f"v_cvt_pk_bf16_f32 v{b['om']+1}, v{b['f']+2}, v{b['f']+3}")))

def gen_k1(a):
    a.l.append(".p2align 8"); a.l.append(".globl k1_kernel"); a.l.append(".type k1_kernel,@function"); a.lab("k1_kernel")
    a("s_cmp_ge_u32 s2, 256"); a("s_cbranch_scc1 k1_end")
    stamp(a, 0)
    if STAMP: a("s_memrealtime s[94:95]")
    a("s_load_dwordx4 s[4:7], s[0:1], 8")
    a("s_load_dwordx4 s[8:11], s[0:1], 40")
    a("s_load_dwordx2 s[12:13], s[0:1], 80")
    a("v_lshrrev_b32 v1, 6, v0"); a("v_and_b32 v2, 63, v0"); a.nop(1)
    a("v_readfirstlane_b32 s14, v1")
    a("s_and_b32 s3, s2, 7"); a("s_lshr_b32 s15, s2, 3")
    a("s_and_b32 s62, s15, 1"); a("s_lshl_b32 s3, s3, 1"); a("s_add_u32 s62, s62, s3")
    a("s_lshr_b32 s63, s15, 1")
    a("s_and_b32 s64, s14, 3")
    a("s_lshr_b32 s65, s14, 2")
    a(f"s_mov_b32 s61, {LOG2E:#x}")
    a("s_waitcnt lgkmcnt(0)")
    stamp(a, 4)
    a.srd(24, 12, 13, WS_SIZE)
    a.srd(28, 6, 7, 16384)
    a("s_cmp_ge_u32 s62, 6"); a("s_cbranch_scc1 k1_sel_gu")
    a.srd(16, 4, 5, 512 * 1536 * 2); a.srd(20, 4, 5, 512 * 1536 * 2)
    a("s_movk_i32 s57, 3072")
    a("s_cmp_ge_u32 s62, 4"); a("s_cbranch_scc1 k1_sel_q")
    a("s_lshl_b32 s58, s62, 8"); a("s_add_u32 s59, s58, 2048"); a("s_add_u32 s58, s58, 1024")
    a("s_lshl_b32 s66, s62, 12")
    a("s_branch k1_sel_done")
    a.lab("k1_sel_q")
    a("s_sub_u32 s58, s62, 4"); a("s_lshl_b32 s66, s58, 13"); a("s_lshl_b32 s58, s58, 9"); a("s_add_u32 s59, s58, 256")
    a("s_branch k1_sel_done")
    a.lab("k1_sel_gu")
    a.srd(16, 8, 9, 512 * 1376 * 2); a.srd(20, 10, 11, 512 * 1376 * 2)
    a("s_movk_i32 s57, 2752")
    a("s_sub_u32 s58, s62, 6"); a("s_mul_i32 s58, s58, 288"); a("s_mov_b32 s59, s58"); a("s_mov_b32 s66, 0")
    a.lab("k1_sel_done")
    a("s_mul_i32 s67, s64, 5"); a("s_lshl_b32 s68, s64, 2"); a("s_add_u32 s68, s68, 20")
    a("s_cmp_eq_u32 s65, 1"); a("s_cselect_b32 s67, s67, s68")
    a("v_lshlrev_b32 v3, 4, v2")
    for i in range(5):
        a(f"s_add_u32 s68, s67, {i}")
        a("s_cmp_ge_u32 s68, 18"); a("s_cselect_b32 s69, 1, 0")
        a("s_mul_i32 s70, s69, 18"); a("s_sub_u32 s68, s68, s70")
        a("s_cmp_ge_u32 s68, 9"); a("s_cselect_b32 s70, 1, 0")
        for w in range(4): a(f"s_cselect_b32 s{32+4*i+w}, s{20+w}, s{16+w}")
        a("s_cselect_b32 s72, s59, s58")
        a("s_mul_i32 s71, s70, 9"); a("s_sub_u32 s68, s68, s71")
        a("s_mul_i32 s71, s69, 18432"); a(f"s_mul_i32 s{52+i}, s70, 9216"); a(f"s_add_u32 s{52+i}, s{52+i}, s71")
        a("s_lshl_b32 s71, s68, 10"); a(f"s_add_u32 s{52+i}, s{52+i}, s71")
        a("v_add_u32 v4, s71, v3")
        a("v_mul_u32_u24 v5, 58255, v4"); a("v_lshrrev_b32 v5, 24, v5")
        a("v_mul_u32_u24 v6, 288, v5"); a("v_sub_u32 v6, v4, v6")
        a("v_bfe_u32 v7, v5, 2, 2"); a("v_lshlrev_b32 v7, 3, v7")
        a("v_lshrrev_b32 v8, 4, v5"); a("v_lshl_add_u32 v7, v8, 2, v7")
        a("v_and_b32 v8, 3, v5"); a("v_add_u32 v7, v7, v8")
        a("s_lshl_b32 s71, s69, 5"); a("v_add_u32 v7, s71, v7")
        a("v_mul_lo_u32 v7, v7, s57")
        a("v_add3_u32 v7, v7, v6, s72")
        a(f"v_mov_b32 v{20+i}, v7")
    a("v_lshrrev_b32 v4, 2, v2"); a("v_mul_u32_u24 v4, 288, v4")
    a("v_and_b32 v5, 3, v2"); a("v_lshl_add_u32 v4, v5, 3, v4")
    a("s_lshl_b32 s68, s65, 7"); a("v_add_u32 v16, s68, v4")
    for s in range(1, 3): a(f"v_add_u32 v{16+s}, {s*STG}, v16")
    a("s_lshl_b32 s68, s63, 7"); a("s_lshl_b32 s69, s64, 5"); a("s_add_u32 s73, s68, s69")
    a("s_lshl_b32 s68, s63, 17"); a("s_lshl_b32 s69, s14, 14"); a("s_add_u32 s68, s68, s69"); a("v_add_u32 v26, s68, v3")
    a("s_lshl_b32 s75, s14, 11"); a(f"s_add_u32 s75, s75, {WSTG}")
    a("s_lshl_b32 s68, s64, 12"); a(f"s_add_u32 s68, s68, {WSTG}"); a("v_add_u32 v27, s68, v3"); a(f"v_add_u32 v28, {2*STG}, v27")
    a("s_lshl_b32 s68, s14, 10"); a("s_add_u32 s69, s66, s68"); a("v_add_u32 v9, s69, v3")
    a(f"s_add_u32 s68, s68, {WPHI_LDS}")
    def prologue(nd):
        for st in range(2): k1_dma(a, st, nd)
        stamp(a, 5)
    a("s_cmp_eq_u32 s65, 1"); a("s_cbranch_scc1 k1_wc1")
    prologue(4)
    a("s_cmp_ge_u32 s62, 6"); a("s_cbranch_scc1 k1_gu5")
    a("s_cmp_ge_u32 s62, 4"); a("s_cbranch_scc1 k1_q_a")
    k1_mainloop(a, "kva", 4, 4, (True, False)); a("s_branch k1_kv_epi")
    a.lab("k1_q_a"); k1_mainloop(a, "qa", 4, 4, (True, True)); a("s_branch k1_q_epi")
    a.lab("k1_gu5"); k1_mainloop(a, "gu5", 5, 4, (True, True)); a("s_branch k1_gu_epi")
    a.lab("k1_wc1")
    prologue(5)
    a("s_cmp_ge_u32 s62, 4"); a("s_cbranch_scc1 k1_tt_b")
    k1_mainloop(a, "kvb", 4, 5, (True, False)); a("s_branch k1_kv_epi")
    a.lab("k1_tt_b"); k1_mainloop(a, "ttb", 4, 5, (True, True))
    a("s_cmp_ge_u32 s62, 6"); a("s_cbranch_scc1 k1_gu_epi")
    a.lab("k1_q_epi"); stamp(a, 3)
    a("s_waitcnt vmcnt(0)"); a("s_barrier")
    a.nop(8)
    a(f"v_lshlrev_b32 v3, 3, v2"); a(f"v_add_u32 v3, {WPHI_LDS}, v3")
    a("s_lshl_b32 s68, s65, 11"); a("v_add_u32 v3, s68, v3")
    a("v_lshlrev_b32 v4, 4, v2")
    a("s_sub_u32 s68, s62, 4"); a("s_lshl_b32 s68, s68, 14"); a("s_lshl_b32 s69, s65, 12"); a("s_add_u32 s68, s68, s69")
    a("s_lshl_b32 s69, s73, 11"); a("s_add_u32 s68, s68, s69")
    a(f"s_add_u32 s68, s68, {PHI_OFF}"); a("v_add_u32 v4, s68, v4"); a("v_add_u32 v5, 0x8000, v4")
    for R in range(2):
        for ui in range(4): a(f"ds_read_b64_tr_b16 {vr(32+(R*4+ui)*2,2)}, v3 offset:{(8*R+ui)*512}")
    a("s_waitcnt lgkmcnt(0)")
    for R in range(2):
        a(f"s_movk_i32 s75, {R*8192}")
        for up in range(2):
            blocks = []
            for ui in (2 * up, 2 * up + 1):
                for b in range(2):
                    k = len(blocks)
                    blocks.append((accreg(R, ui, b), 32 + (R * 4 + ui) * 2, 64 + k * 20, 48 + k * 4, 50 + k * 4))
            phi_multi(a, blocks)
            k = 0
            for ui in (2 * up, 2 * up + 1):
                for b in range(2):
                    a(f"buffer_store_dwordx4 {vr(48+k*4,4)}, v{4+b}, s[24:27], s75 offen offset:{ui*1024}"); k += 1
    a("s_branch k1_end")
    a.lab("k1_kv_epi"); stamp(a, 3)
    a("s_waitcnt vmcnt(0)")
    a.nop(8)
    a("s_barrier")
    a(f"v_lshlrev_b32 v3, 3, v2"); a(f"v_add_u32 v3, {WPHI_LDS}, v3")
    a("s_lshl_b32 s68, s65, 11"); a("v_add_u32 v3, s68, v3")
    a("v_and_b32 v4, 15, v2"); a("v_lshrrev_b32 v5, 4, v2"); a("v_lshlrev_b32 v5, 2, v5"); a("v_sub_u32 v4, v4, v5")
    a("v_mov_b32 v10, 0x3f80"); a("v_mov_b32 v11, 0x3f800000"); a("v_mov_b32 v8, 0"); a("v_mov_b32 v9, 0")
    a("v_cmp_eq_u32 vcc, 0, v4"); a.nop(2); a("v_cndmask_b32 v8, v8, v10, vcc")
    a("v_cmp_eq_u32 vcc, 1, v4"); a.nop(2); a("v_cndmask_b32 v8, v8, v11, vcc")
    a("v_cmp_eq_u32 vcc, 2, v4"); a.nop(2); a("v_cndmask_b32 v9, v9, v10, vcc")
    a("v_cmp_eq_u32 vcc, 3, v4"); a.nop(2); a("v_cndmask_b32 v9, v9, v11, vcc")
    for i in range(4): a(f"v_mov_b32 v{12+i}, 0x3f803f80")
    a("v_and_b32 v4, 15, v2"); a("v_lshlrev_b32 v4, 7, v4"); a("v_lshrrev_b32 v5, 4, v2"); a("v_lshl_add_u32 v4, v5, 5, v4")
    a("s_mul_i32 s68, s64, 17408"); a("s_lshl_b32 s69, s65, 13"); a("s_add_u32 s69, s69, s68"); a("v_add_u32 v4, s69, v4")
    a("s_lshl_b32 s69, s65, 9"); a("s_add_u32 s69, s69, s68"); a("s_add_u32 s69, s69, 16384")
    a("v_lshlrev_b32 v5, 5, v5"); a("v_add_u32 v5, s69, v5")
    for ui in range(4): a(f"ds_read_b64_tr_b16 {vr(32+ui*2,2)}, v3 offset:{ui*512}")
    a("s_waitcnt lgkmcnt(0)")
    for up in range(2):
        uis = (2 * up, 2 * up + 1)
        blocks = []
        for ui in uis:
            for b in range(2):
                k = len(blocks)
                blocks.append((accreg(0, ui, b), 32 + ui * 2, 64 + k * 20, 48 + k * 4, 50 + k * 4))
        phi_multi(a, blocks)
        a.nop(1)
        for k in range(4):
            for sg in range(2):
                a(f"v_mfma_f32_16x16x16_bf16 {vr(64+(k*2+sg)*4,4)}, {vr(48+k*4+sg*2,2)}, v[8:9], 0")
        for hi, ui in enumerate(uis):
            for b in range(2):
                va = accreg(1, ui, b)
                a(f"v_cvt_pk_bf16_f32 v{112+hi*4+2*b}, v{va}, v{va+1}"); a(f"v_cvt_pk_bf16_f32 v{113+hi*4+2*b}, v{va+2}, v{va+3}")
        a.nop(1)
        for hi in range(2):
            for b in range(2):
                for sg in range(2):
                    t = 64 + ((hi * 2 + b) * 2 + sg) * 4
                    o = 96 + (hi * 2 + sg) * 4 + 2 * b
                    a(f"v_cvt_pk_bf16_f32 v{o}, v{t}, v{t+1}"); a(f"v_cvt_pk_bf16_f32 v{o+1}, v{t+2}, v{t+3}")
        a.nop(2)
        for hi in range(2):
            for sg in range(2):
                a(f"v_mfma_f32_16x16x32_bf16 {vr(120+(hi*2+sg)*4,4)}, {vr(96+(hi*2+sg)*4,4)}, {vr(112+hi*4,4)}, 0")
                a(f"v_mfma_f32_16x16x32_bf16 {vr(136+(hi*2+sg)*4,4)}, {vr(96+(hi*2+sg)*4,4)}, v[12:15], 0")
        a.nop(8)
        for hi, ui in enumerate(uis):
            for sg in range(2):
                a(f"ds_write_b128 v4, {vr(120+(hi*2+sg)*4,4)} offset:{ui*2048+sg*16}")
                a(f"ds_write_b128 v5, {vr(136+(hi*2+sg)*4,4)} offset:{ui*128+sg*16}")
    a("s_waitcnt lgkmcnt(0)"); a("s_barrier")
    a("v_lshlrev_b32 v3, 2, v0"); a("v_add_u32 v5, 34816, v3")
    a("s_lshl_b32 s68, s62, 14"); a(f"s_add_u32 s68, s68, {KV_OFF}"); a("v_add_u32 v4, s68, v3")
    for i in range(8):
        for w in range(4): a(f"ds_read_b32 v{8+w}, v{3+2*(w>>1)} offset:{(w&1)*17408+i*2048}")
        a("s_waitcnt lgkmcnt(0)")
        a("v_add_f32 v8, v8, v9"); a("v_add_f32 v10, v10, v11"); a("v_add_f32 v8, v8, v10")
        a(f"s_movk_i32 s70, {i*2048}")
        a(f"buffer_atomic_add_f32 v8, v4, s[24:27], s70 offen")
    a("s_cmp_ge_u32 s14, 4"); a("s_cbranch_scc1 k1_end")
    a("s_lshl_b32 s68, s62, 10"); a(f"s_add_u32 s68, s68, {Z_OFF}"); a("v_add_u32 v4, s68, v3")
    for w in range(4): a(f"ds_read_b32 v{8+w}, v{3+2*(w>>1)} offset:{(w&1)*17408+16384}")
    a("s_waitcnt lgkmcnt(0)")
    a("v_add_f32 v8, v8, v9"); a("v_add_f32 v10, v10, v11"); a("v_add_f32 v8, v8, v10")
    a("buffer_atomic_add_f32 v8, v4, s[24:27], 0 offen")
    a("s_branch k1_end")
    a.lab("k1_gu_epi"); stamp(a, 3)
    a.nop(8)
    a("v_and_b32 v4, 15, v2"); a("v_lshlrev_b32 v4, 4, v4")
    a("v_lshrrev_b32 v5, 5, v2"); a("v_lshl_add_u32 v4, v5, 8, v4"); a("v_bfe_u32 v5, v2, 4, 1"); a("v_lshl_add_u32 v4, v5, 3, v4")
    a("s_lshl_b32 s69, s65, 7"); a("s_add_u32 s69, s69, s58")
    a("s_lshr_b32 s68, s73, 4"); a("s_mul_i32 s68, s68, 44032"); a("s_lshl_b32 s70, s69, 4"); a("s_add_u32 s68, s68, s70")
    a(f"s_add_u32 s68, s68, {H_OFF}"); a("v_add_u32 v4, s68, v4"); a(f"v_add_u32 v5, 44032, v4")
    a("s_movk_i32 s75, 4096")
    for ui in range(5):
        uu = 8 if ui == 4 else ui
        if ui == 4: a("s_cmp_eq_u32 s65, 1"); a("s_cbranch_scc1 k1_end")
        a(f"s_add_u32 s70, s69, {uu*32}"); a("s_cmp_ge_u32 s70, 2752"); a(f"s_cbranch_scc1 k1_gu_skip{ui}")
        for b in range(2):
            g = accreg(0, ui, b); u = accreg(1, ui, b); T = 48 + b * 16
            rb_pair(a, g, g + 1, T); rb_pair(a, g + 2, g + 3, T)
            rb_pair(a, u, u + 1, T); rb_pair(a, u + 2, u + 3, T)
            for i in range(4): a(f"v_mul_f32 v{T+i}, s61, v{g+i}")
            for i in range(4): a(f"v_exp_f32 v{T+i}, -v{T+i}")
            a.nop(1)
            for i in range(4): a(f"v_add_f32 v{T+i}, 1.0, v{T+i}")
            for i in range(4): a(f"v_rcp_f32 v{T+i}, v{T+i}")
            a.nop(1)
            for i in range(4): a(f"v_mul_f32 v{T+i}, v{T+i}, v{g+i}")
            rb_pair(a, T, T + 1, T + 4); rb_pair(a, T + 2, T + 3, T + 4)
            for i in range(4): a(f"v_mul_f32 v{T+i}, v{T+i}, v{u+i}")
            a(f"v_cvt_pk_bf16_f32 v{T+8}, v{T}, v{T+1}"); a(f"v_cvt_pk_bf16_f32 v{T+9}, v{T+2}, v{T+3}")
            if uu < 8: a(f"buffer_store_dwordx2 {vr(T+8,2)}, v{4+b}, s[24:27], 0 offen offset:{uu*512}")
            else: a(f"buffer_store_dwordx2 {vr(T+8,2)}, v{4+b}, s[24:27], s75 offen")
        a.lab(f"k1_gu_skip{ui}")
    a.lab("k1_end")
    if STAMP:
        a("s_cmp_ge_u32 s2, 256"); a("s_cbranch_scc1 k1_end2")
        stamp(a, 6); a("s_waitcnt vmcnt(0)"); stamp(a, 7); a("s_mov_b64 s[92:93], s[94:95]"); stamp_out(a, 24, 9, 0)
        a.lab("k1_end2")
    a("s_endpgm")

def main():
    a = Asm()
    hdr = open(f"cdna_kernels/{NAME}.s.ref").read().split("; Override launch")[0]
    launches = ["; @launch kernel=k0_kernel grid=(512,1,1) block=(64,1,1) lds=0",
                f"; @launch kernel=k1_kernel grid=(256,1,1) block=(512,1,1) lds={K1_LDS}"]
    extra = []
    try:
        import gen3
        launches.append(gen3.LAUNCH)
        extra.append(gen3)
    except ImportError:
        pass
    out = hdr + "\n".join(launches) + "\n" + '.amdgcn_target "amdgcn-amd-amdhsa--gfx950"\n.text\n'
    gen_k0(a); gen_k1(a)
    for m in extra: m.gen(a)
    out += "\n".join(a.l) + "\n" + '.section .rodata,"a"\n' + kdesc("k0_kernel", 128) + kdesc("k1_kernel", 256)
    for m in extra: out += m.desc()
    dst = sys.argv[1] if len(sys.argv) > 1 else f"cdna_kernels/{NAME}.s"
    open(dst, "w").write(out)
main()
```

```python
import sys, re, os
NAME = "recurrent_scan__linear_kernel_hedgehog__glu_gated_swiglu__prompt"
MB = 1 << 20
XN_OFF, H_OFF, PHI_OFF, KV_OFF = 0, 2 * MB, 8 * MB, 12 * MB
Z_OFF = KV_OFF + 65536
WS_SIZE = 16 * MB
LOG2E = 0x3fb8aa3b
import os
DBG = bool(os.environ.get('GDBG'))

class Asm:
    def __init__(s): s.l = []
    def __call__(s, t):
        m = re.search(r"offset:(\d+)", t)
        if m and t.startswith("buffer_"): assert int(m.group(1)) <= 4095, t
        if m and t.startswith("ds_"): assert int(m.group(1)) <= 65535, t
        s.l.append("    " + t)
    def lab(s, t): s.l.append(t + ":")
    def nop(s, n):
        while n > 0:
            k = min(n, 16); s(f"s_nop {k-1}"); n -= k
    def srd(s, d, lo, hi, size):
        s(f"s_mov_b32 s{d}, s{lo}"); s(f"s_and_b32 s{d+1}, s{hi}, 0xffff")
        s(f"s_mov_b32 s{d+2}, {size}"); s(f"s_mov_b32 s{d+3}, 0x00020000")

STAMP = bool(os.environ.get('STAMP'))
PREFETCH = int(os.environ.get('PREFETCH', '2'))
def stamp(a, i):
    if STAMP:
        a(f"s_memtime s[{76+2*i}:{77+2*i}]")
def stamp_out(a, srd, n, tag):
    if not STAMP: return
    a(f"s_memrealtime s[{76+2*n}:{77+2*n}]")
    a("s_waitcnt lgkmcnt(0)")
    a("s_lshl_b32 s74, s2, 3"); a("s_add_u32 s74, s74, s14"); a("s_lshl_b32 s74, s74, 7"); a(f"s_add_u32 s74, s74, {14*MB + tag*(1<<19)}")
    a("v_mov_b32 v250, s74")
    for i in range(2 * (n + 1)):
        a(f"v_mov_b32 v251, s{76+i}"); a(f"buffer_store_dword v251, v250, s[{srd}:{srd+3}], 0 offen offset:{4*i}")
def vr(a, n): return f"v[{a}:{a+n-1}]"

def kdesc(name, vgpr, sgpr=100):
    return f""".p2align 6
.amdhsa_kernel {name}
  .amdhsa_next_free_vgpr {vgpr}
  .amdhsa_next_free_sgpr {sgpr}
  .amdhsa_accum_offset {(vgpr+3)//4*4}
  .amdhsa_group_segment_fixed_size 0
  .amdhsa_kernarg_size 88
  .amdhsa_user_sgpr_count 2
  .amdhsa_user_sgpr_kernarg_segment_ptr 1
  .amdhsa_system_sgpr_workgroup_id_x 1
.end_amdhsa_kernel
"""

def gen_k0(a):
    a.l.append(".p2align 8"); a.l.append(".globl k0_kernel"); a.l.append(".type k0_kernel,@function"); a.lab("k0_kernel")
    a("s_cmp_ge_u32 s2, 512"); a("s_cbranch_scc1 k0_end")
    a("s_load_dwordx2 s[4:5], s[0:1], 0"); a("s_load_dwordx2 s[6:7], s[0:1], 80")
    a("v_and_b32 v1, 15, v0"); a("v_lshrrev_b32 v2, 4, v0")
    a("s_lshl_b32 s3, s2, 12")
    a("v_lshlrev_b32 v3, 10, v2"); a("v_lshl_add_u32 v3, v1, 4, v3"); a("v_add_u32 v3, s3, v3")
    a("s_waitcnt lgkmcnt(0)")
    a.srd(8, 4, 5, 2 * MB); a.srd(12, 6, 7, WS_SIZE)
    for c in range(4): a(f"buffer_load_dwordx4 {vr(4+4*c,4)}, v3, s[8:11], 0 offen offset:{256*c}")
    if PREFETCH:
        a("s_load_dwordx2 s[20:21], s[0:1], 8")
        a("s_load_dwordx2 s[22:23], s[0:1], 24")
        a("s_load_dwordx4 s[24:27], s[0:1], 40")
        a("s_load_dwordx2 s[28:29], s[0:1], 56")
        a("s_and_b32 s30, s2, 7"); a("s_lshr_b32 s31, s2, 3")
        a("v_lshrrev_b32 v70, 3, v0"); a("s_lshl_b32 s32, s31, 3"); a("v_add_u32 v70, s32, v70")
        a("v_and_b32 v71, 7, v0"); a("v_mul_u32_u24 v71, 40, v71")
        a("s_waitcnt lgkmcnt(0)")
        for e in range(2):
            a(f"s_lshl_b32 s33, s30, 1"); a(f"s_add_u32 s33, s33, {e}")
            a("s_cmp_ge_u32 s33, 6"); a(f"s_cbranch_scc1 k0_pf_gu{e}")
            a.srd(36, 20, 21, 512 * 1536 * 2); a.srd(40, 20, 21, 512 * 1536 * 2)
            a("s_movk_i32 s34, 3072")
            a("s_cmp_ge_u32 s33, 4"); a(f"s_cbranch_scc1 k0_pf_q{e}")
            a("s_lshl_b32 s44, s33, 8"); a("s_add_u32 s45, s44, 2048"); a("s_add_u32 s44, s44, 1024")
            a(f"s_branch k0_pf_d{e}")
            a.lab(f"k0_pf_q{e}")
            a("s_sub_u32 s44, s33, 4"); a("s_lshl_b32 s44, s44, 9"); a("s_add_u32 s45, s44, 256")
            a(f"s_branch k0_pf_d{e}")
            a.lab(f"k0_pf_gu{e}")
            a.srd(36, 24, 25, 512 * 1376 * 2); a.srd(40, 26, 27, 512 * 1376 * 2)
            a("s_movk_i32 s34, 2752"); a("s_sub_u32 s44, s33, 6"); a("s_mul_i32 s44, s44, 288"); a("s_mov_b32 s45, s44")
            a.lab(f"k0_pf_d{e}")
            a("v_mul_lo_u32 v72, v70, s34"); a("v_add_u32 v72, v72, v71")
            a(f"buffer_load_dword v{128+2*e}, v72, s[36:39], s44 offen")
            a(f"buffer_load_dword v{129+2*e}, v72, s[40:43], s45 offen")
        if PREFETCH > 1:
            a.srd(36, 28, 29, 1376 * 1024); a.srd(40, 22, 23, 512 * 1024)
            a("v_lshlrev_b32 v72, 7, v0"); a("s_mul_i32 s44, s31, 24576")
            for i in range(3):
                a(f"s_add_u32 s45, s44, {i*8192}"); a(f"buffer_load_dword v{132+i}, v72, s[36:39], s45 offen")
            a("s_lshl_b32 s44, s31, 13"); a("buffer_load_dword v135, v72, s[40:43], s44 offen")
    a("s_cmp_ge_u32 s2, 68"); a("s_cbranch_scc1 k0_nz")
    for i in range(4): a(f"v_mov_b32 v{20+i}, 0")
    a("s_lshl_b32 s16, s2, 10"); a(f"s_add_u32 s16, s16, {KV_OFF}")
    a("v_lshlrev_b32 v24, 4, v0"); a("v_add_u32 v24, s16, v24")
    a("buffer_store_dwordx4 v[20:23], v24, s[12:15], 0 offen")
    a.lab("k0_nz")
    a(f"s_waitcnt vmcnt({[0,4,8][PREFETCH]})")
    for i in range(16):
        a(f"v_lshlrev_b32 v{32+2*i}, 16, v{4+i}"); a(f"v_and_b32 v{33+2*i}, 0xffff0000, v{4+i}")
    for i in range(16): a(f"v_add_f32 v{64+i}, v{32+2*i}, v{33+2*i}")
    n = 16
    while n > 1:
        for i in range(n // 2): a(f"v_add_f32 v{64+i}, v{64+i}, v{64+i+n//2}")
        n //= 2
    def red16(r):
        for sh in (8, 4, 2, 1):
            a.nop(2); a(f"v_add_f32_dpp v{r}, v{r}, v{r} row_ror:{sh} row_mask:0xf bank_mask:0xf")
    red16(64)
    a("v_mul_f32 v64, 0x3b000000, v64")
    a("v_cvt_pk_bf16_f32 v65, v64, v64"); a("v_lshlrev_b32 v65, 16, v65")
    for i in range(32): a(f"v_sub_f32 v{80+i}, v{32+i}, v64")
    for i in range(16): a(f"v_mul_f32 v{112+i}, v{80+2*i}, v{80+2*i}")
    for i in range(16): a(f"v_fmac_f32 v{112+i}, v{81+2*i}, v{81+2*i}")
    n = 16
    while n > 1:
        for i in range(n // 2): a(f"v_add_f32 v{112+i}, v{112+i}, v{112+i+n//2}")
        n //= 2
    red16(112)
    a("v_mul_f32 v66, 0x3b000000, v112")
    a("v_cvt_pk_bf16_f32 v66, v66, v66"); a("v_lshlrev_b32 v66, 16, v66")
    a("v_add_f32 v66, 0x3727c5ac, v66")
    a("v_cvt_pk_bf16_f32 v66, v66, v66"); a("v_lshlrev_b32 v66, 16, v66")
    a("v_sqrt_f32 v66, v66"); a.nop(1)
    a("v_cvt_pk_bf16_f32 v66, v66, v66"); a("v_lshlrev_b32 v66, 16, v66")
    a("v_rcp_f32 v66, v66"); a.nop(1)
    for i in range(32): a(f"v_sub_f32 v{80+i}, v{32+i}, v65")
    for i in range(16): a(f"v_cvt_pk_bf16_f32 v{112+i}, v{80+2*i}, v{81+2*i}")
    for i in range(16):
        a(f"v_lshlrev_b32 v{80+2*i}, 16, v{112+i}"); a(f"v_and_b32 v{81+2*i}, 0xffff0000, v{112+i}")
    for i in range(32): a(f"v_mul_f32 v{80+i}, v{80+i}, v66")
    for i in range(16): a(f"v_cvt_pk_bf16_f32 v{4+i}, v{80+2*i}, v{81+2*i}")
    a("s_lshr_b32 s16, s2, 2"); a("s_lshl_b32 s16, s16, 14"); a("s_and_b32 s17, s2, 3"); a("s_lshl_b32 s17, s17, 6"); a("s_add_u32 s16, s16, s17")
    a("v_lshrrev_b32 v20, 2, v1"); a("v_lshlrev_b32 v20, 10, v20"); a("v_and_b32 v21, 3, v1"); a("v_lshl_add_u32 v20, v21, 8, v20")
    a("v_lshl_add_u32 v20, v2, 4, v20"); a("v_add_u32 v20, s16, v20")
    for c in range(4):
        a(f"s_movk_i32 s17, {4096*c}")
        a(f"buffer_store_dwordx4 {vr(4+4*c,4)}, v20, s[12:15], s17 offen")
    a.lab("k0_end"); a("s_endpgm")

WSTG = 36864
STG = WSTG + 16384
NSLOT = 3
WPHI_LDS = STG * 2
K1_LDS = STG * NSLOT
A0, BR, ACC = 48, 32, 176
def areg(b, kb): return A0 + (b * 2 + (kb & 1)) * 4
def accreg(R, ui, b): return ACC + ((R * 5 + ui) * 2 + b) * 4

def k1_dma(a, stage, nd):
    sl = stage % NSLOT
    for i in range(nd):
        a(f"s_add_u32 m0, s{52+i}, {sl*STG}")
        a(f"s_mul_i32 s60, s57, {stage*64}")
        a(f"buffer_load_dwordx4 v{20+i}, s[{32+4*i}:{35+4*i}], s60 offen lds")
    a(f"s_add_u32 m0, s75, {sl*STG}")
    a(f"s_movk_i32 s60, {stage*2048}")
    a("buffer_load_dwordx4 v26, s[24:27], s60 offen lds")
    a("buffer_load_dwordx4 v26, s[24:27], s60 offen offset:1024 lds")

def k1_mainloop(a, tag, NU, nd, transp):
    items = [(kb, R, ui) for kb in range(2) for R in range(2) for ui in range(NU)]
    def rd(stage, it):
        kb, R, ui = items[it]
        u = 8 if ui == 4 else ui
        off = kb * 18432 + R * 9216 + u * 32
        br = BR + (it % 4) * 4
        a(f"ds_read_b64_tr_b16 {vr(br,2)}, v{16+stage%NSLOT} offset:{off}")
        a(f"ds_read_b64_tr_b16 {vr(br+2,2)}, v{16+stage%NSLOT} offset:{off+4608}")
    for st in range(8):
        rem = min(1, 7 - st)
        a(f"s_waitcnt vmcnt({rem*(nd+2)})"); a("s_barrier")
        if st == 0: stamp(a, 1)
        if st == 4: stamp(a, 2)
        sl = st % NSLOT
        for kb in range(2):
            for b in range(2):
                a(f"ds_read_b128 {vr(areg(b,kb),4)}, v{27 if sl < 2 else 28} offset:{(sl if sl < 2 else 0)*STG+b*2048+kb*1024}")
        n = len(items)
        for it in range(3): rd(st, it)
        if st + 2 < 8: k1_dma(a, st + 2, nd)
        if st == 6:
            a("s_mov_b32 m0, s68"); a.nop(1)
            a("buffer_load_dwordx4 v9, s[28:31], 0 offen lds")
        for it in range(n):
            if it + 3 < n: rd(st, it + 3)
            ahead = min(3, n - 1 - it)
            a(f"s_waitcnt lgkmcnt({2*ahead})")
            kb, R, ui = items[it]
            br = BR + (it % 4) * 4
            for b in range(2):
                ac = accreg(R, ui, b); ar = areg(b, kb)
                c = "0" if (st == 0 and kb == 0) else vr(ac, 4)
                if transp[R]: a(f"v_mfma_f32_16x16x32_bf16 {vr(ac,4)}, {vr(br,4)}, {vr(ar,4)}, {c}")
                else: a(f"v_mfma_f32_16x16x32_bf16 {vr(ac,4)}, {vr(ar,4)}, {vr(br,4)}, {c}")

def rb_pair(a, x0, x1, t):
    a(f"v_cvt_pk_bf16_f32 v{t}, v{x0}, v{x1}")
    a(f"v_lshlrev_b32 v{x0}, 16, v{t}"); a(f"v_and_b32 v{x1}, 0xffff0000, v{t}")

def phi_block(a, ac, wp, T, outp, outm):
    t0 = T; p = T + 2; e = T + 6; f = T + 10; mx = T + 14; nm = T + 15; c = T + 16; d = T + 17
    a(f"v_cvt_pk_bf16_f32 v{t0}, v{ac}, v{ac+1}"); a(f"v_cvt_pk_bf16_f32 v{t0+1}, v{ac+2}, v{ac+3}")
    a.nop(2)
    a(f"v_mfma_f32_16x16x16_bf16 {vr(p,4)}, {vr(wp,2)}, {vr(t0,2)}, 0")
    a.nop(8)
    rb_pair(a, p, p + 1, t0); rb_pair(a, p + 2, p + 3, t0 + 1)
    a(f"v_max3_f32 v{mx}, v{p}, v{p+1}, v{p+2}"); a(f"v_max3_f32 v{nm}, -v{p}, -v{p+1}, -v{p+2}")
    a(f"v_max_f32 v{mx}, v{mx}, v{p+3}"); a(f"v_max_f32_e64 v{nm}, v{nm}, -v{p+3}")
    def cross(x, y, op):
        a.nop(2); a(f"v_permlane32_swap_b32 v{x}, v{y}")
        a(f"{op} v{c}, v{x}, v{y}"); a(f"v_mov_b32 v{d}, v{c}")
        a.nop(2); a(f"v_permlane16_swap_b32 v{c}, v{d}")
        a(f"{op} v{x}, v{c}, v{d}"); a(f"v_mov_b32 v{y}, v{x}")
        a.nop(2); a(f"v_permlane32_swap_b32 v{x}, v{y}")
    cross(mx, nm, "v_max_f32")
    a(f"v_mul_f32 v{mx}, s61, v{mx}"); a(f"v_mul_f32 v{nm}, s61, v{nm}")
    for i in range(4):
        a(f"v_fma_f32 v{e+i}, v{p+i}, s61, -v{mx}"); a(f"v_fma_f32 v{f+i}, -v{p+i}, s61, -v{nm}")
    for i in range(4):
        a(f"v_exp_f32 v{e+i}, v{e+i}"); a(f"v_exp_f32 v{f+i}, v{f+i}")
    a.nop(1)
    a(f"v_add_f32 v{mx}, v{e}, v{e+1}"); a(f"v_add_f32 v{nm}, v{f}, v{f+1}")
    a(f"v_add_f32 v{c}, v{e+2}, v{e+3}"); a(f"v_add_f32 v{d}, v{f+2}, v{f+3}")
    a(f"v_add_f32 v{mx}, v{mx}, v{c}"); a(f"v_add_f32 v{nm}, v{nm}, v{d}")
    cross(mx, nm, "v_add_f32")
    a(f"v_rcp_f32 v{mx}, v{mx}"); a(f"v_rcp_f32 v{nm}, v{nm}"); a.nop(1)
    for i in range(4):
        a(f"v_mul_f32 v{e+i}, v{e+i}, v{mx}"); a(f"v_mul_f32 v{f+i}, v{f+i}, v{nm}")
    a(f"v_cvt_pk_bf16_f32 v{outp}, v{e}, v{e+1}"); a(f"v_cvt_pk_bf16_f32 v{outp+1}, v{e+2}, v{e+3}")
    a(f"v_cvt_pk_bf16_f32 v{outm}, v{f}, v{f+1}"); a(f"v_cvt_pk_bf16_f32 v{outm+1}, v{f+2}, v{f+3}")

def phi_multi(a, blocks):
    n = len(blocks)
    B = [dict(ac=ac, wp=wp, t0=T, p=T+2, e=T+6, f=T+10, mx=T+14, nm=T+15, c=T+16, d=T+17, op=op, om=om) for ac, wp, T, op, om in blocks]
    def each(fn):
        for b in B: fn(b)
    each(lambda b: (a(f"v_cvt_pk_bf16_f32 v{b['t0']}, v{b['ac']}, v{b['ac']+1}"), a(f"v_cvt_pk_bf16_f32 v{b['t0']+1}, v{b['ac']+2}, v{b['ac']+3}")))
    a.nop(1)
    each(lambda b: a(f"v_mfma_f32_16x16x16_bf16 {vr(b['p'],4)}, {vr(b['wp'],2)}, {vr(b['t0'],2)}, 0"))
    a.nop(8)
    each(lambda b: (a(f"v_cvt_pk_bf16_f32 v{b['t0']}, v{b['p']}, v{b['p']+1}"), a(f"v_cvt_pk_bf16_f32 v{b['t0']+1}, v{b['p']+2}, v{b['p']+3}")))
    each(lambda b: (a(f"v_lshlrev_b32 v{b['p']}, 16, v{b['t0']}"), a(f"v_and_b32 v{b['p']+1}, 0xffff0000, v{b['t0']}"),
                    a(f"v_lshlrev_b32 v{b['p']+2}, 16, v{b['t0']+1}"), a(f"v_and_b32 v{b['p']+3}, 0xffff0000, v{b['t0']+1}")))
    each(lambda b: (a(f"v_max3_f32 v{b['mx']}, v{b['p']}, v{b['p']+1}, v{b['p']+2}"), a(f"v_max3_f32 v{b['nm']}, -v{b['p']}, -v{b['p']+1}, -v{b['p']+2}")))
    each(lambda b: (a(f"v_max_f32 v{b['mx']}, v{b['mx']}, v{b['p']+3}"), a(f"v_max_f32_e64 v{b['nm']}, v{b['nm']}, -v{b['p']+3}")))
    def cross(op):
        pad = max(0, 2 - (n - 1))
        a.nop(1 if n > 1 else 2)
        each(lambda b: a(f"v_permlane32_swap_b32 v{b['mx']}, v{b['nm']}"))
        each(lambda b: a(f"{op} v{b['c']}, v{b['mx']}, v{b['nm']}"))
        each(lambda b: a(f"v_mov_b32 v{b['d']}, v{b['c']}"))
        a.nop(pad)
        each(lambda b: a(f"v_permlane16_swap_b32 v{b['c']}, v{b['d']}"))
        each(lambda b: a(f"{op} v{b['mx']}, v{b['c']}, v{b['d']}"))
        each(lambda b: a(f"v_mov_b32 v{b['nm']}, v{b['mx']}"))
        a.nop(pad)
        each(lambda b: a(f"v_permlane32_swap_b32 v{b['mx']}, v{b['nm']}"))
    cross("v_max_f32")
    each(lambda b: (a(f"v_mul_f32 v{b['mx']}, s61, v{b['mx']}"), a(f"v_mul_f32 v{b['nm']}, s61, v{b['nm']}")))
    for i in range(4):
        each(lambda b: (a(f"v_fma_f32 v{b['e']+i}, v{b['p']+i}, s61, -v{b['mx']}"), a(f"v_fma_f32 v{b['f']+i}, -v{b['p']+i}, s61, -v{b['nm']}")))
    for i in range(4):
        each(lambda b: (a(f"v_exp_f32 v{b['e']+i}, v{b['e']+i}"), a(f"v_exp_f32 v{b['f']+i}, v{b['f']+i}")))
    a.nop(1)
    each(lambda b: (a(f"v_add_f32 v{b['mx']}, v{b['e']}, v{b['e']+1}"), a(f"v_add_f32 v{b['nm']}, v{b['f']}, v{b['f']+1}"),
                    a(f"v_add_f32 v{b['c']}, v{b['e']+2}, v{b['e']+3}"), a(f"v_add_f32 v{b['d']}, v{b['f']+2}, v{b['f']+3}")))
    each(lambda b: (a(f"v_add_f32 v{b['mx']}, v{b['mx']}, v{b['c']}"), a(f"v_add_f32 v{b['nm']}, v{b['nm']}, v{b['d']}")))
    cross("v_add_f32")
    each(lambda b: (a(f"v_rcp_f32 v{b['mx']}, v{b['mx']}"), a(f"v_rcp_f32 v{b['nm']}, v{b['nm']}")))
    a.nop(1)
    for i in range(4):
        each(lambda b: (a(f"v_mul_f32 v{b['e']+i}, v{b['e']+i}, v{b['mx']}"), a(f"v_mul_f32 v{b['f']+i}, v{b['f']+i}, v{b['nm']}")))
    each(lambda b: (a(f"v_cvt_pk_bf16_f32 v{b['op']}, v{b['e']}, v{b['e']+1}"), a(f"v_cvt_pk_bf16_f32 v{b['op']+1}, v{b['e']+2}, v{b['e']+3}"),
                    a(f"v_cvt_pk_bf16_f32 v{b['om']}, v{b['f']}, v{b['f']+1}"), a(f"v_cvt_pk_bf16_f32 v{b['om']+1}, v{b['f']+2}, v{b['f']+3}")))

def gen_k1(a):
    a.l.append(".p2align 8"); a.l.append(".globl k1_kernel"); a.l.append(".type k1_kernel,@function"); a.lab("k1_kernel")
    a("s_cmp_ge_u32 s2, 256"); a("s_cbranch_scc1 k1_end")
    stamp(a, 0)
    if STAMP: a("s_memrealtime s[94:95]")
    a("s_load_dwordx4 s[4:7], s[0:1], 8")
    a("s_load_dwordx4 s[8:11], s[0:1], 40")
    a("s_load_dwordx2 s[12:13], s[0:1], 80")
    a("v_lshrrev_b32 v1, 6, v0"); a("v_and_b32 v2, 63, v0"); a.nop(1)
    a("v_readfirstlane_b32 s14, v1")
    a("s_and_b32 s3, s2, 7"); a("s_lshr_b32 s15, s2, 3")
    a("s_and_b32 s62, s15, 1"); a("s_lshl_b32 s3, s3, 1"); a("s_add_u32 s62, s62, s3")
    a("s_lshr_b32 s63, s15, 1")
    a("s_and_b32 s64, s14, 3")
    a("s_lshr_b32 s65, s14, 2")
    a(f"s_mov_b32 s61, {LOG2E:#x}")
    a("s_waitcnt lgkmcnt(0)")
    stamp(a, 4)
    a.srd(24, 12, 13, WS_SIZE)
    a.srd(28, 6, 7, 16384)
    a("s_cmp_ge_u32 s62, 6"); a("s_cbranch_scc1 k1_sel_gu")
    a.srd(16, 4, 5, 512 * 1536 * 2); a.srd(20, 4, 5, 512 * 1536 * 2)
    a("s_movk_i32 s57, 3072")
    a("s_cmp_ge_u32 s62, 4"); a("s_cbranch_scc1 k1_sel_q")
    a("s_lshl_b32 s58, s62, 8"); a("s_add_u32 s59, s58, 2048"); a("s_add_u32 s58, s58, 1024")
    a("s_lshl_b32 s66, s62, 12")
    a("s_branch k1_sel_done")
    a.lab("k1_sel_q")
    a("s_sub_u32 s58, s62, 4"); a("s_lshl_b32 s66, s58, 13"); a("s_lshl_b32 s58, s58, 9"); a("s_add_u32 s59, s58, 256")
    a("s_branch k1_sel_done")
    a.lab("k1_sel_gu")
    a.srd(16, 8, 9, 512 * 1376 * 2); a.srd(20, 10, 11, 512 * 1376 * 2)
    a("s_movk_i32 s57, 2752")
    a("s_sub_u32 s58, s62, 6"); a("s_mul_i32 s58, s58, 288"); a("s_mov_b32 s59, s58"); a("s_mov_b32 s66, 0")
    a.lab("k1_sel_done")
    a("s_mul_i32 s67, s64, 5"); a("s_lshl_b32 s68, s64, 2"); a("s_add_u32 s68, s68, 20")
    a("s_cmp_eq_u32 s65, 1"); a("s_cselect_b32 s67, s67, s68")
    a("v_lshlrev_b32 v3, 4, v2")
    for i in range(5):
        a(f"s_add_u32 s68, s67, {i}")
        a("s_cmp_ge_u32 s68, 18"); a("s_cselect_b32 s69, 1, 0")
        a("s_mul_i32 s70, s69, 18"); a("s_sub_u32 s68, s68, s70")
        a("s_cmp_ge_u32 s68, 9"); a("s_cselect_b32 s70, 1, 0")
        for w in range(4): a(f"s_cselect_b32 s{32+4*i+w}, s{20+w}, s{16+w}")
        a("s_cselect_b32 s72, s59, s58")
        a("s_mul_i32 s71, s70, 9"); a("s_sub_u32 s68, s68, s71")
        a("s_mul_i32 s71, s69, 18432"); a(f"s_mul_i32 s{52+i}, s70, 9216"); a(f"s_add_u32 s{52+i}, s{52+i}, s71")
        a("s_lshl_b32 s71, s68, 10"); a(f"s_add_u32 s{52+i}, s{52+i}, s71")
        a("v_add_u32 v4, s71, v3")
        a("v_mul_u32_u24 v5, 58255, v4"); a("v_lshrrev_b32 v5, 24, v5")
        a("v_mul_u32_u24 v6, 288, v5"); a("v_sub_u32 v6, v4, v6")
        a("v_bfe_u32 v7, v5, 2, 2"); a("v_lshlrev_b32 v7, 3, v7")
        a("v_lshrrev_b32 v8, 4, v5"); a("v_lshl_add_u32 v7, v8, 2, v7")
        a("v_and_b32 v8, 3, v5"); a("v_add_u32 v7, v7, v8")
        a("s_lshl_b32 s71, s69, 5"); a("v_add_u32 v7, s71, v7")
        a("v_mul_lo_u32 v7, v7, s57")
        a("v_add3_u32 v7, v7, v6, s72")
        a(f"v_mov_b32 v{20+i}, v7")
    a("v_lshrrev_b32 v4, 2, v2"); a("v_mul_u32_u24 v4, 288, v4")
    a("v_and_b32 v5, 3, v2"); a("v_lshl_add_u32 v4, v5, 3, v4")
    a("s_lshl_b32 s68, s65, 7"); a("v_add_u32 v16, s68, v4")
    for s in range(1, 3): a(f"v_add_u32 v{16+s}, {s*STG}, v16")
    a("s_lshl_b32 s68, s63, 7"); a("s_lshl_b32 s69, s64, 5"); a("s_add_u32 s73, s68, s69")
    a("s_lshl_b32 s68, s63, 17"); a("s_lshl_b32 s69, s14, 14"); a("s_add_u32 s68, s68, s69"); a("v_add_u32 v26, s68, v3")
    a("s_lshl_b32 s75, s14, 11"); a(f"s_add_u32 s75, s75, {WSTG}")
    a("s_lshl_b32 s68, s64, 12"); a(f"s_add_u32 s68, s68, {WSTG}"); a("v_add_u32 v27, s68, v3"); a(f"v_add_u32 v28, {2*STG}, v27")
    a("s_lshl_b32 s68, s14, 10"); a("s_add_u32 s69, s66, s68"); a("v_add_u32 v9, s69, v3")
    a(f"s_add_u32 s68, s68, {WPHI_LDS}")
    def prologue(nd):
        for st in range(2): k1_dma(a, st, nd)
        stamp(a, 5)
    a("s_cmp_eq_u32 s65, 1"); a("s_cbranch_scc1 k1_wc1")
    prologue(4)
    a("s_cmp_ge_u32 s62, 6"); a("s_cbranch_scc1 k1_gu5")
    a("s_cmp_ge_u32 s62, 4"); a("s_cbranch_scc1 k1_q_a")
    k1_mainloop(a, "kva", 4, 4, (True, False)); a("s_branch k1_kv_epi")
    a.lab("k1_q_a"); k1_mainloop(a, "qa", 4, 4, (True, True)); a("s_branch k1_q_epi")
    a.lab("k1_gu5"); k1_mainloop(a, "gu5", 5, 4, (True, True)); a("s_branch k1_gu_epi")
    a.lab("k1_wc1")
    prologue(5)
    a("s_cmp_ge_u32 s62, 4"); a("s_cbranch_scc1 k1_tt_b")
    k1_mainloop(a, "kvb", 4, 5, (True, False)); a("s_branch k1_kv_epi")
    a.lab("k1_tt_b"); k1_mainloop(a, "ttb", 4, 5, (True, True))
    a("s_cmp_ge_u32 s62, 6"); a("s_cbranch_scc1 k1_gu_epi")
    a.lab("k1_q_epi"); stamp(a, 3)
    a("s_waitcnt vmcnt(0)"); a("s_barrier")
    a.nop(8)
    a(f"v_lshlrev_b32 v3, 3, v2"); a(f"v_add_u32 v3, {WPHI_LDS}, v3")
    a("s_lshl_b32 s68, s65, 11"); a("v_add_u32 v3, s68, v3")
    a("v_lshlrev_b32 v4, 4, v2")
    a("s_sub_u32 s68, s62, 4"); a("s_lshl_b32 s68, s68, 14"); a("s_lshl_b32 s69, s65, 12"); a("s_add_u32 s68, s68, s69")
    a("s_lshl_b32 s69, s73, 11"); a("s_add_u32 s68, s68, s69")
    a(f"s_add_u32 s68, s68, {PHI_OFF}"); a("v_add_u32 v4, s68, v4"); a("v_add_u32 v5, 0x8000, v4")
    for R in range(2):
        for ui in range(4): a(f"ds_read_b64_tr_b16 {vr(32+(R*4+ui)*2,2)}, v3 offset:{(8*R+ui)*512}")
    a("s_waitcnt lgkmcnt(0)")
    for R in range(2):
        a(f"s_movk_i32 s75, {R*8192}")
        for up in range(2):
            blocks = []
            for ui in (2 * up, 2 * up + 1):
                for b in range(2):
                    k = len(blocks)
                    blocks.append((accreg(R, ui, b), 32 + (R * 4 + ui) * 2, 64 + k * 20, 48 + k * 4, 50 + k * 4))
            phi_multi(a, blocks)
            k = 0
            for ui in (2 * up, 2 * up + 1):
                for b in range(2):
                    a(f"buffer_store_dwordx4 {vr(48+k*4,4)}, v{4+b}, s[24:27], s75 offen offset:{ui*1024}"); k += 1
    a("s_branch k1_end")
    a.lab("k1_kv_epi"); stamp(a, 3)
    a("s_waitcnt vmcnt(0)")
    a.nop(8)
    a("s_barrier")
    a(f"v_lshlrev_b32 v3, 3, v2"); a(f"v_add_u32 v3, {WPHI_LDS}, v3")
    a("s_lshl_b32 s68, s65, 11"); a("v_add_u32 v3, s68, v3")
    a("v_and_b32 v4, 15, v2"); a("v_lshrrev_b32 v5, 4, v2"); a("v_lshlrev_b32 v5, 2, v5"); a("v_sub_u32 v4, v4, v5")
    a("v_mov_b32 v10, 0x3f80"); a("v_mov_b32 v11, 0x3f800000"); a("v_mov_b32 v8, 0"); a("v_mov_b32 v9, 0")
    a("v_cmp_eq_u32 vcc, 0, v4"); a.nop(2); a("v_cndmask_b32 v8, v8, v10, vcc")
    a("v_cmp_eq_u32 vcc, 1, v4"); a.nop(2); a("v_cndmask_b32 v8, v8, v11, vcc")
    a("v_cmp_eq_u32 vcc, 2, v4"); a.nop(2); a("v_cndmask_b32 v9, v9, v10, vcc")
    a("v_cmp_eq_u32 vcc, 3, v4"); a.nop(2); a("v_cndmask_b32 v9, v9, v11, vcc")
    for i in range(4): a(f"v_mov_b32 v{12+i}, 0x3f803f80")
    a("v_and_b32 v4, 15, v2"); a("v_lshlrev_b32 v4, 7, v4"); a("v_lshrrev_b32 v5, 4, v2"); a("v_lshl_add_u32 v4, v5, 5, v4")
    a("s_mul_i32 s68, s64, 17408"); a("s_lshl_b32 s69, s65, 13"); a("s_add_u32 s69, s69, s68"); a("v_add_u32 v4, s69, v4")
    a("s_lshl_b32 s69, s65, 9"); a("s_add_u32 s69, s69, s68"); a("s_add_u32 s69, s69, 16384")
    a("v_lshlrev_b32 v5, 5, v5"); a("v_add_u32 v5, s69, v5")
    for ui in range(4): a(f"ds_read_b64_tr_b16 {vr(32+ui*2,2)}, v3 offset:{ui*512}")
    a("s_waitcnt lgkmcnt(0)")
    for up in range(2):
        uis = (2 * up, 2 * up + 1)
        blocks = []
        for ui in uis:
            for b in range(2):
                k = len(blocks)
                blocks.append((accreg(0, ui, b), 32 + ui * 2, 64 + k * 20, 48 + k * 4, 50 + k * 4))
        phi_multi(a, blocks)
        a.nop(1)
        for k in range(4):
            for sg in range(2):
                a(f"v_mfma_f32_16x16x16_bf16 {vr(64+(k*2+sg)*4,4)}, {vr(48+k*4+sg*2,2)}, v[8:9], 0")
        for hi, ui in enumerate(uis):
            for b in range(2):
                va = accreg(1, ui, b)
                a(f"v_cvt_pk_bf16_f32 v{112+hi*4+2*b}, v{va}, v{va+1}"); a(f"v_cvt_pk_bf16_f32 v{113+hi*4+2*b}, v{va+2}, v{va+3}")
        a.nop(1)
        for hi in range(2):
            for b in range(2):
                for sg in range(2):
                    t = 64 + ((hi * 2 + b) * 2 + sg) * 4
                    o = 96 + (hi * 2 + sg) * 4 + 2 * b
                    a(f"v_cvt_pk_bf16_f32 v{o}, v{t}, v{t+1}"); a(f"v_cvt_pk_bf16_f32 v{o+1}, v{t+2}, v{t+3}")
        a.nop(2)
        for hi in range(2):
            for sg in range(2):
                a(f"v_mfma_f32_16x16x32_bf16 {vr(120+(hi*2+sg)*4,4)}, {vr(96+(hi*2+sg)*4,4)}, {vr(112+hi*4,4)}, 0")
                a(f"v_mfma_f32_16x16x32_bf16 {vr(136+(hi*2+sg)*4,4)}, {vr(96+(hi*2+sg)*4,4)}, v[12:15], 0")
        a.nop(8)
        for hi, ui in enumerate(uis):
            for sg in range(2):
                a(f"ds_write_b128 v4, {vr(120+(hi*2+sg)*4,4)} offset:{ui*2048+sg*16}")
                a(f"ds_write_b128 v5, {vr(136+(hi*2+sg)*4,4)} offset:{ui*128+sg*16}")
    a("s_waitcnt lgkmcnt(0)"); a("s_barrier")
    a("v_lshlrev_b32 v3, 2, v0"); a("v_add_u32 v5, 34816, v3")
    a("s_lshl_b32 s68, s62, 14"); a(f"s_add_u32 s68, s68, {KV_OFF}"); a("v_add_u32 v4, s68, v3")
    for i in range(8):
        for w in range(4): a(f"ds_read_b32 v{8+w}, v{3+2*(w>>1)} offset:{(w&1)*17408+i*2048}")
        a("s_waitcnt lgkmcnt(0)")
        a("v_add_f32 v8, v8, v9"); a("v_add_f32 v10, v10, v11"); a("v_add_f32 v8, v8, v10")
        a(f"s_movk_i32 s70, {i*2048}")
        a(f"buffer_atomic_add_f32 v8, v4, s[24:27], s70 offen")
    a("s_cmp_ge_u32 s14, 4"); a("s_cbranch_scc1 k1_end")
    a("s_lshl_b32 s68, s62, 10"); a(f"s_add_u32 s68, s68, {Z_OFF}"); a("v_add_u32 v4, s68, v3")
    for w in range(4): a(f"ds_read_b32 v{8+w}, v{3+2*(w>>1)} offset:{(w&1)*17408+16384}")
    a("s_waitcnt lgkmcnt(0)")
    a("v_add_f32 v8, v8, v9"); a("v_add_f32 v10, v10, v11"); a("v_add_f32 v8, v8, v10")
    a("buffer_atomic_add_f32 v8, v4, s[24:27], 0 offen")
    a("s_branch k1_end")
    a.lab("k1_gu_epi"); stamp(a, 3)
    a.nop(8)
    a("v_and_b32 v4, 15, v2"); a("v_lshlrev_b32 v4, 4, v4")
    a("v_lshrrev_b32 v5, 5, v2"); a("v_lshl_add_u32 v4, v5, 8, v4"); a("v_bfe_u32 v5, v2, 4, 1"); a("v_lshl_add_u32 v4, v5, 3, v4")
    a("s_lshl_b32 s69, s65, 7"); a("s_add_u32 s69, s69, s58")
    a("s_lshr_b32 s68, s73, 4"); a("s_mul_i32 s68, s68, 44032"); a("s_lshl_b32 s70, s69, 4"); a("s_add_u32 s68, s68, s70")
    a(f"s_add_u32 s68, s68, {H_OFF}"); a("v_add_u32 v4, s68, v4"); a(f"v_add_u32 v5, 44032, v4")
    a("s_movk_i32 s75, 4096")
    for ui in range(5):
        uu = 8 if ui == 4 else ui
        if ui == 4: a("s_cmp_eq_u32 s65, 1"); a("s_cbranch_scc1 k1_end")
        a(f"s_add_u32 s70, s69, {uu*32}"); a("s_cmp_ge_u32 s70, 2752"); a(f"s_cbranch_scc1 k1_gu_skip{ui}")
        for b in range(2):
            g = accreg(0, ui, b); u = accreg(1, ui, b); T = 48 + b * 16
            rb_pair(a, g, g + 1, T); rb_pair(a, g + 2, g + 3, T)
            rb_pair(a, u, u + 1, T); rb_pair(a, u + 2, u + 3, T)
            for i in range(4): a(f"v_mul_f32 v{T+i}, s61, v{g+i}")
            for i in range(4): a(f"v_exp_f32 v{T+i}, -v{T+i}")
            a.nop(1)
            for i in range(4): a(f"v_add_f32 v{T+i}, 1.0, v{T+i}")
            for i in range(4): a(f"v_rcp_f32 v{T+i}, v{T+i}")
            a.nop(1)
            for i in range(4): a(f"v_mul_f32 v{T+i}, v{T+i}, v{g+i}")
            rb_pair(a, T, T + 1, T + 4); rb_pair(a, T + 2, T + 3, T + 4)
            for i in range(4): a(f"v_mul_f32 v{T+i}, v{T+i}, v{u+i}")
            a(f"v_cvt_pk_bf16_f32 v{T+8}, v{T}, v{T+1}"); a(f"v_cvt_pk_bf16_f32 v{T+9}, v{T+2}, v{T+3}")
            if uu < 8: a(f"buffer_store_dwordx2 {vr(T+8,2)}, v{4+b}, s[24:27], 0 offen offset:{uu*512}")
            else: a(f"buffer_store_dwordx2 {vr(T+8,2)}, v{4+b}, s[24:27], s75 offen")
        a.lab(f"k1_gu_skip{ui}")
    a.lab("k1_end")
    if STAMP:
        a("s_cmp_ge_u32 s2, 256"); a("s_cbranch_scc1 k1_end2")
        stamp(a, 6); a("s_waitcnt vmcnt(0)"); stamp(a, 7); a("s_mov_b64 s[92:93], s[94:95]"); stamp_out(a, 24, 9, 0)
        a.lab("k1_end2")
    a("s_endpgm")

def main():
    a = Asm()
    hdr = open(f"cdna_kernels/{NAME}.s.ref").read().split("; Override launch")[0]
    launches = ["; @launch kernel=k0_kernel grid=(512,1,1) block=(64,1,1) lds=0",
                f"; @launch kernel=k1_kernel grid=(256,1,1) block=(512,1,1) lds={K1_LDS}"]
    extra = []
    try:
        import gen3
        launches.append(gen3.LAUNCH)
        extra.append(gen3)
    except ImportError:
        pass
    out = hdr + "\n".join(launches) + "\n" + '.amdgcn_target "amdgcn-amd-amdhsa--gfx950"\n.text\n'
    gen_k0(a); gen_k1(a)
    for m in extra: m.gen(a)
    out += "\n".join(a.l) + "\n" + '.section .rodata,"a"\n' + kdesc("k0_kernel", 136) + kdesc("k1_kernel", 256)
    for m in extra: out += m.desc()
    dst = sys.argv[1] if len(sys.argv) > 1 else f"cdna_kernels/{NAME}.s"
    open(dst, "w").write(out)
main()
```

```python
import sys, re, os
NAME = "recurrent_scan__linear_kernel_hedgehog__glu_gated_swiglu__prompt"
MB = 1 << 20
XN_OFF, H_OFF, PHI_OFF, KV_OFF = 0, 2 * MB, 8 * MB, 12 * MB
Z_OFF = KV_OFF + 65536
WS_SIZE = 16 * MB
LOG2E = 0x3fb8aa3b
STAMP = bool(os.environ.get('STAMP'))
PREFETCH = int(os.environ.get('PREFETCH', '2'))

class Asm:
    def __init__(s): s.l = []
    def __call__(s, t):
        m = re.search(r"offset:(\d+)", t)
        if m and t.startswith("buffer_"): assert int(m.group(1)) <= 4095, t
        if m and t.startswith("ds_"): assert int(m.group(1)) <= 65535, t
        s.l.append("    " + t)
    def lab(s, t): s.l.append(t + ":")
    def nop(s, n):
        while n > 0:
            k = min(n, 16); s(f"s_nop {k-1}"); n -= k
    def srd(s, d, lo, hi, size):
        s(f"s_mov_b32 s{d}, s{lo}"); s(f"s_and_b32 s{d+1}, s{hi}, 0xffff")
        s(f"s_mov_b32 s{d+2}, {size}"); s(f"s_mov_b32 s{d+3}, 0x00020000")
    def head(s, name):
        s.l += [".p2align 8", f".globl {name}", f".type {name},@function"]; s.lab(name)

def stamp(a, i):
    if STAMP: a(f"s_memtime s[{76+2*i}:{77+2*i}]")
def stamp_out(a, srd, n, tag):
    if not STAMP: return
    a(f"s_memrealtime s[{76+2*n}:{77+2*n}]")
    a("s_waitcnt lgkmcnt(0)")
    a("s_lshl_b32 s74, s2, 3"); a("s_add_u32 s74, s74, s14"); a("s_lshl_b32 s74, s74, 7"); a(f"s_add_u32 s74, s74, {14*MB + tag*(1<<19)}")
    a("v_mov_b32 v250, s74")
    for i in range(2 * (n + 1)):
        a(f"v_mov_b32 v251, s{76+i}"); a(f"buffer_store_dword v251, v250, s[{srd}:{srd+3}], 0 offen offset:{4*i}")
def vr(a, n): return f"v[{a}:{a+n-1}]"
def kdesc(name, vgpr, sgpr=100):
    return f""".p2align 6
.amdhsa_kernel {name}
  .amdhsa_next_free_vgpr {vgpr}
  .amdhsa_next_free_sgpr {sgpr}
  .amdhsa_accum_offset {(vgpr+3)//4*4}
  .amdhsa_group_segment_fixed_size 0
  .amdhsa_kernarg_size 88
  .amdhsa_user_sgpr_count 2
  .amdhsa_user_sgpr_kernarg_segment_ptr 1
  .amdhsa_system_sgpr_workgroup_id_x 1
.end_amdhsa_kernel
"""
def rb_pair(a, x0, x1, t):
    a(f"v_cvt_pk_bf16_f32 v{t}, v{x0}, v{x1}")
    a(f"v_lshlrev_b32 v{x0}, 16, v{t}"); a(f"v_and_b32 v{x1}, 0xffff0000, v{t}")

def gen_k0(a):
    a.head("k0_kernel")
    a("s_cmp_ge_u32 s2, 512"); a("s_cbranch_scc1 k0_end")
    a("s_load_dwordx2 s[4:5], s[0:1], 0"); a("s_load_dwordx2 s[6:7], s[0:1], 80")
    a("v_and_b32 v1, 15, v0"); a("v_lshrrev_b32 v2, 4, v0")
    a("s_lshl_b32 s3, s2, 12")
    a("v_lshlrev_b32 v3, 10, v2"); a("v_lshl_add_u32 v3, v1, 4, v3"); a("v_add_u32 v3, s3, v3")
    a("s_waitcnt lgkmcnt(0)")
    a.srd(8, 4, 5, 2 * MB); a.srd(12, 6, 7, WS_SIZE)
    for c in range(4): a(f"buffer_load_dwordx4 {vr(4+4*c,4)}, v3, s[8:11], 0 offen offset:{256*c}")
    npf = 0
    if PREFETCH:
        a("s_load_dwordx2 s[20:21], s[0:1], 8")
        a("s_load_dwordx2 s[22:23], s[0:1], 24")
        a("s_load_dwordx4 s[24:27], s[0:1], 40")
        a("s_load_dwordx2 s[28:29], s[0:1], 56")
        a("s_and_b32 s30, s2, 7"); a("s_lshr_b32 s31, s2, 3")
        a("v_lshrrev_b32 v70, 3, v0"); a("s_lshl_b32 s32, s31, 3"); a("v_add_u32 v70, s32, v70")
        a("v_and_b32 v71, 7, v0")
        a("s_waitcnt lgkmcnt(0)")
        a.srd(36, 20, 21, 512 * 1536 * 2); a.srd(40, 24, 25, 512 * 1376 * 2); a.srd(44, 26, 27, 512 * 1376 * 2)
        a("v_lshrrev_b32 v72, 1, v71"); a("v_cmp_eq_u32 vcc, 3, v72"); a.nop(2); a("v_cndmask_b32 v72, v72, 0, vcc")
        a("v_lshlrev_b32 v72, 10, v72"); a("v_and_b32 v73, 1, v71"); a("v_lshl_add_u32 v72, v73, 6, v72")
        a("v_mul_u32_u24 v73, 3072, v70"); a("v_add_u32 v72, v72, v73")
        a("s_lshl_b32 s33, s30, 7")
        a("buffer_load_dword v128, v72, s[36:39], s33 offen")
        a("v_mul_u32_u24 v72, 48, v71"); a("v_mul_u32_u24 v73, 2752, v70"); a("v_add_u32 v72, v72, v73")
        a("s_mul_i32 s33, s30, 352")
        a("buffer_load_dword v129, v72, s[40:43], s33 offen"); a("buffer_load_dword v130, v72, s[44:47], s33 offen")
        npf = 3
        if PREFETCH > 1:
            a.srd(36, 28, 29, 1376 * 1024); a.srd(40, 22, 23, 512 * 1024)
            a("v_lshlrev_b32 v72, 7, v0"); a("s_mul_i32 s44, s31, 24576")
            for i in range(3):
                a(f"s_add_u32 s45, s44, {i*8192}"); a(f"buffer_load_dword v{132+i}, v72, s[36:39], s45 offen")
            a("s_lshl_b32 s44, s31, 13"); a("buffer_load_dword v135, v72, s[40:43], s44 offen")
            npf = 7
    a("s_cmp_ge_u32 s2, 68"); a("s_cbranch_scc1 k0_nz")
    for i in range(4): a(f"v_mov_b32 v{20+i}, 0")
    a("s_lshl_b32 s16, s2, 10"); a(f"s_add_u32 s16, s16, {KV_OFF}")
    a("v_lshlrev_b32 v24, 4, v0"); a("v_add_u32 v24, s16, v24")
    a("buffer_store_dwordx4 v[20:23], v24, s[12:15], 0 offen")
    a.lab("k0_nz")
    a(f"s_waitcnt vmcnt({npf})")
    for i in range(16):
        a(f"v_lshlrev_b32 v{32+2*i}, 16, v{4+i}"); a(f"v_and_b32 v{33+2*i}, 0xffff0000, v{4+i}")
    for i in range(16): a(f"v_add_f32 v{64+i}, v{32+2*i}, v{33+2*i}")
    n = 16
    while n > 1:
        for i in range(n // 2): a(f"v_add_f32 v{64+i}, v{64+i}, v{64+i+n//2}")
        n //= 2
    def red16(r):
        for sh in (8, 4, 2, 1):
            a.nop(2); a(f"v_add_f32_dpp v{r}, v{r}, v{r} row_ror:{sh} row_mask:0xf bank_mask:0xf")
    red16(64)
    a("v_mul_f32 v64, 0x3b000000, v64")
    a("v_cvt_pk_bf16_f32 v65, v64, v64"); a("v_lshlrev_b32 v65, 16, v65")
    for i in range(32): a(f"v_sub_f32 v{80+i}, v{32+i}, v64")
    for i in range(16): a(f"v_mul_f32 v{112+i}, v{80+2*i}, v{80+2*i}")
    for i in range(16): a(f"v_fmac_f32 v{112+i}, v{81+2*i}, v{81+2*i}")
    n = 16
    while n > 1:
        for i in range(n // 2): a(f"v_add_f32 v{112+i}, v{112+i}, v{112+i+n//2}")
        n //= 2
    red16(112)
    a("v_mul_f32 v66, 0x3b000000, v112")
    a("v_cvt_pk_bf16_f32 v66, v66, v66"); a("v_lshlrev_b32 v66, 16, v66")
    a("v_add_f32 v66, 0x3727c5ac, v66")
    a("v_cvt_pk_bf16_f32 v66, v66, v66"); a("v_lshlrev_b32 v66, 16, v66")
    a("v_sqrt_f32 v66, v66"); a.nop(1)
    a("v_cvt_pk_bf16_f32 v66, v66, v66"); a("v_lshlrev_b32 v66, 16, v66")
    a("v_rcp_f32 v66, v66"); a.nop(1)
    for i in range(32): a(f"v_sub_f32 v{80+i}, v{32+i}, v65")
    for i in range(16): a(f"v_cvt_pk_bf16_f32 v{112+i}, v{80+2*i}, v{81+2*i}")
    for i in range(16):
        a(f"v_lshlrev_b32 v{80+2*i}, 16, v{112+i}"); a(f"v_and_b32 v{81+2*i}, 0xffff0000, v{112+i}")
    for i in range(32): a(f"v_mul_f32 v{80+i}, v{80+i}, v66")
    for i in range(16): a(f"v_cvt_pk_bf16_f32 v{4+i}, v{80+2*i}, v{81+2*i}")
    a("s_lshr_b32 s16, s2, 2"); a("s_lshl_b32 s16, s16, 14"); a("s_and_b32 s17, s2, 3"); a("s_lshl_b32 s17, s17, 6"); a("s_add_u32 s16, s16, s17")
    a("v_lshrrev_b32 v20, 2, v1"); a("v_lshlrev_b32 v20, 10, v20"); a("v_and_b32 v21, 3, v1"); a("v_lshl_add_u32 v20, v21, 8, v20")
    a("v_lshl_add_u32 v20, v2, 4, v20"); a("v_add_u32 v20, s16, v20")
    for c in range(4):
        a(f"s_movk_i32 s17, {4096*c}")
        a(f"buffer_store_dwordx4 {vr(4+4*c,4)}, v20, s[12:15], s17 offen")
    a.lab("k0_end"); a("s_endpgm")

AOFF = 22528
STG = AOFF + 8192
NSLOT = 5
WPHI_LDS = STG * NSLOT
K1_LDS = WPHI_LDS + 2048
NST = 16
BR = 32
AR = 48
ACC = 160
SL, S1 = 62, 64

class LQ:
    def __init__(s, a): s.a = a; s.q = []
    def issue(s, tag, text): s.a(text); s.q.append(tag)
    def need(s, tags):
        idx = max((i for i, t in enumerate(s.q) if t in tags), default=-1)
        if idx < 0: return
        k = len(s.q) - 1 - idx
        s.a(f"s_waitcnt lgkmcnt({min(k,15)})")
        s.q = s.q[idx + 1:] if k <= 15 else s.q[len(s.q) - 15:]

def k1_dma(a, stage, nd):
    sl = stage % NSLOT
    for i in range(nd):
        a(f"s_add_u32 m0, s{52+i}, {sl*STG}")
        a(f"s_mul_i32 s60, s{56+i}, {stage}")
        a(f"buffer_load_dwordx4 v{20+i}, s[{36+4*i}:{39+4*i}], s60 offen lds")

def k1_main(a, units, RS, nd):
    lq = LQ(a)
    n = len(units)
    seq = [(st, i) for st in range(NST) for i in range(n)]
    def rd(k):
        st, i = seq[k]
        sl = st % NSLOT
        if i == 0:
            for b in range(2):
                lq.issue(('A', st, b), f"ds_read_b128 {vr(AR+((st&1)*2+b)*4,4)}, v{27+sl//2} offset:{(sl%2)*STG+b*1024}")
        off = units[i][0]; br = BR + (k % 4) * 4
        base = 16 + sl // 2; o2 = (sl % 2) * STG
        lq.issue(('B', k), f"ds_read_b64_tr_b16 {vr(br,2)}, v{base} offset:{o2+off}")
        lq.issue(('B', k), f"ds_read_b64_tr_b16 {vr(br+2,2)}, v{base} offset:{o2+off+16*RS}")
    for st in range(4): k1_dma(a, st, nd)
    stamp(a, 5)
    a(f"s_waitcnt vmcnt({2*nd})"); a("s_barrier")
    stamp(a, 1)
    for k in range(3): rd(k)
    for k, (st, i) in enumerate(seq):
        if i == 0:
            if st > 0:
                rem = max(0, min(st + 3, NST - 1) - (st + 1))
                a(f"s_waitcnt vmcnt({rem*nd})"); a("s_barrier")
            if st == 8: stamp(a, 2)
            if st + 4 < NST: k1_dma(a, st + 4, nd)
        if k + 3 < len(seq): rd(k + 3)
        lq.need({('B', k), ('A', st, 0), ('A', st, 1)})
        off, ac, tr = units[i]; br = BR + (k % 4) * 4
        for b in range(2):
            ar = AR + ((st & 1) * 2 + b) * 4; d = ac + b * 4
            c = "0" if st == 0 else vr(d, 4)
            if tr: a(f"v_mfma_f32_16x16x32_bf16 {vr(d,4)}, {vr(br,4)}, {vr(ar,4)}, {c}")
            else: a(f"v_mfma_f32_16x16x32_bf16 {vr(d,4)}, {vr(ar,4)}, {vr(br,4)}, {c}")

def phi_multi(a, blocks, ones):
    n = len(blocks)
    B = [dict(ac=ac, wp=wp, t0=T, p=T+2, e=T+6, f=T+10, mx=T+14, nm=T+15, c=T+16, d=T+17, s=T+18, op=op, om=om) for ac, wp, T, op, om in blocks]
    def each(fn):
        for b in B: fn(b)
    each(lambda b: (a(f"v_cvt_pk_bf16_f32 v{b['t0']}, v{b['ac']}, v{b['ac']+1}"), a(f"v_cvt_pk_bf16_f32 v{b['t0']+1}, v{b['ac']+2}, v{b['ac']+3}")))
    a.nop(1)
    each(lambda b: a(f"v_mfma_f32_16x16x16_bf16 {vr(b['p'],4)}, {vr(b['wp'],2)}, {vr(b['t0'],2)}, 0"))
    a.nop(8)
    each(lambda b: (a(f"v_cvt_pk_bf16_f32 v{b['t0']}, v{b['p']}, v{b['p']+1}"), a(f"v_cvt_pk_bf16_f32 v{b['t0']+1}, v{b['p']+2}, v{b['p']+3}")))
    each(lambda b: (a(f"v_lshlrev_b32 v{b['p']}, 16, v{b['t0']}"), a(f"v_and_b32 v{b['p']+1}, 0xffff0000, v{b['t0']}"),
                    a(f"v_lshlrev_b32 v{b['p']+2}, 16, v{b['t0']+1}"), a(f"v_and_b32 v{b['p']+3}, 0xffff0000, v{b['t0']+1}")))
    each(lambda b: (a(f"v_max3_f32 v{b['mx']}, v{b['p']}, v{b['p']+1}, v{b['p']+2}"), a(f"v_max3_f32 v{b['nm']}, -v{b['p']}, -v{b['p']+1}, -v{b['p']+2}")))
    each(lambda b: (a(f"v_max_f32 v{b['mx']}, v{b['mx']}, v{b['p']+3}"), a(f"v_max_f32_e64 v{b['nm']}, v{b['nm']}, -v{b['p']+3}")))
    pad = max(0, 2 - (n - 1))
    a.nop(1 if n > 1 else 2)
    each(lambda b: a(f"v_permlane32_swap_b32 v{b['mx']}, v{b['nm']}"))
    each(lambda b: a(f"v_max_f32 v{b['c']}, v{b['mx']}, v{b['nm']}"))
    each(lambda b: a(f"v_mov_b32 v{b['d']}, v{b['c']}"))
    a.nop(pad)
    each(lambda b: a(f"v_permlane16_swap_b32 v{b['c']}, v{b['d']}"))
    each(lambda b: a(f"v_max_f32 v{b['mx']}, v{b['c']}, v{b['d']}"))
    each(lambda b: a(f"v_mov_b32 v{b['nm']}, v{b['mx']}"))
    a.nop(pad)
    each(lambda b: a(f"v_permlane32_swap_b32 v{b['mx']}, v{b['nm']}"))
    each(lambda b: a(f"v_pk_mul_f32 {vr(b['mx'],2)}, {vr(b['mx'],2)}, s[{SL}:{SL+1}]"))
    for i in (0, 2):
        each(lambda b: a(f"v_pk_fma_f32 {vr(b['e']+i,2)}, {vr(b['p']+i,2)}, s[{SL}:{SL+1}], {vr(b['mx'],2)} op_sel_hi:[1,1,0] neg_lo:[0,0,1] neg_hi:[0,0,1]"))
        each(lambda b: a(f"v_pk_fma_f32 {vr(b['f']+i,2)}, {vr(b['p']+i,2)}, s[{SL}:{SL+1}], {vr(b['mx'],2)} op_sel:[0,0,1] op_sel_hi:[1,1,1] neg_lo:[1,0,1] neg_hi:[1,0,1]"))
    for i in range(4):
        each(lambda b: (a(f"v_exp_f32 v{b['e']+i}, v{b['e']+i}"), a(f"v_exp_f32 v{b['f']+i}, v{b['f']+i}")))
    a.nop(1)
    each(lambda b: (a(f"v_pk_add_f32 {vr(b['mx'],2)}, {vr(b['e'],2)}, {vr(b['e']+2,2)}"), a(f"v_pk_add_f32 {vr(b['c'],2)}, {vr(b['f'],2)}, {vr(b['f']+2,2)}")))
    each(lambda b: (a(f"v_add_f32 v{b['mx']}, v{b['mx']}, v{b['nm']}"), a(f"v_add_f32 v{b['c']}, v{b['c']}, v{b['d']}")))
    a.nop(1)
    each(lambda b: (a(f"v_mfma_f32_16x16x4_f32 {vr(b['p'],4)}, v{ones}, v{b['mx']}, 0"), a(f"v_mfma_f32_16x16x4_f32 {vr(b['s'],4)}, v{ones}, v{b['c']}, 0")))
    a.nop(10)
    each(lambda b: (a(f"v_rcp_f32 v{b['mx']}, v{b['p']}"), a(f"v_rcp_f32 v{b['c']}, v{b['s']}")))
    a.nop(1)
    for i in (0, 2):
        each(lambda b: (a(f"v_pk_mul_f32 {vr(b['e']+i,2)}, {vr(b['e']+i,2)}, {vr(b['mx'],2)} op_sel_hi:[1,0]"),
                        a(f"v_pk_mul_f32 {vr(b['f']+i,2)}, {vr(b['f']+i,2)}, {vr(b['c'],2)} op_sel_hi:[1,0]")))
    each(lambda b: (a(f"v_cvt_pk_bf16_f32 v{b['op']}, v{b['e']}, v{b['e']+1}"), a(f"v_cvt_pk_bf16_f32 v{b['op']+1}, v{b['e']+2}, v{b['e']+3}"),
                    a(f"v_cvt_pk_bf16_f32 v{b['om']}, v{b['f']}, v{b['f']+1}"), a(f"v_cvt_pk_bf16_f32 v{b['om']+1}, v{b['f']+2}, v{b['f']+3}")))

def divmod_lane(a, dst_q, dst_r, src, d):
    magic = (1 << 24) // d + 1
    for o in range(0, 14336, 16): assert (o * magic) >> 24 == o // d, (d, o)
    a(f"v_mul_u32_u24 v{dst_q}, {magic}, v{src}"); a(f"v_lshrrev_b32 v{dst_q}, 24, v{dst_q}")
    a(f"v_mul_u32_u24 v{dst_r}, {d}, v{dst_q}"); a(f"v_sub_u32 v{dst_r}, v{src}, v{dst_r}")

def kmap(a, dst, sr, t):
    a(f"v_bfe_u32 v{dst}, v{sr}, 2, 2"); a(f"v_lshlrev_b32 v{dst}, 3, v{dst}")
    a(f"v_lshrrev_b32 v{t}, 4, v{sr}"); a(f"v_lshl_add_u32 v{dst}, v{t}, 2, v{dst}")
    a(f"v_and_b32 v{t}, 3, v{sr}"); a(f"v_add_u32 v{dst}, v{dst}, v{t}")

def gen_k1(a):
    a.head("k1_kernel")
    a("s_cmp_ge_u32 s2, 256"); a("s_cbranch_scc1 k1_end")
    stamp(a, 0)
    if STAMP: a("s_memrealtime s[94:95]")
    a("s_load_dwordx4 s[4:7], s[0:1], 8")
    a("s_load_dwordx4 s[8:11], s[0:1], 40")
    a("s_load_dwordx2 s[12:13], s[0:1], 80")
    a("v_lshrrev_b32 v1, 6, v0"); a("v_and_b32 v2, 63, v0"); a.nop(1)
    a("v_readfirstlane_b32 s14, v1")
    a("s_and_b32 s66, s2, 7"); a("s_lshr_b32 s15, s2, 3")
    a("s_and_b32 s67, s15, 1")
    a("s_lshr_b32 s68, s15, 1")
    a("s_and_b32 s69, s14, 3")
    a("s_lshr_b32 s70, s14, 2")
    a(f"s_mov_b32 s{SL}, {LOG2E:#x}"); a(f"s_mov_b32 s{SL+1}, {LOG2E:#x}"); a(f"s_mov_b32 s{S1}, 1.0"); a(f"s_mov_b32 s{S1+1}, 1.0")
    a("s_lshl_b32 s71, s68, 7"); a("s_lshl_b32 s72, s69, 5"); a("s_add_u32 s73, s71, s72")
    a("v_lshlrev_b32 v3, 4, v2")
    a("s_waitcnt lgkmcnt(0)")
    stamp(a, 4)
    a.srd(24, 12, 13, WS_SIZE)
    a.srd(16, 4, 5, 512 * 1536 * 2)
    a.srd(28, 8, 9, 512 * 1376 * 2); a.srd(32, 10, 11, 512 * 1376 * 2)
    a("s_lshl_b32 s71, s69, 11"); a(f"s_add_u32 s71, s71, {AOFF}"); a("v_add_u32 v27, s71, v3")
    a(f"v_add_u32 v28, {2*STG}, v27"); a(f"v_add_u32 v29, {4*STG}, v27")
    a("s_cmp_eq_u32 s67, 1"); a("s_cbranch_scc1 k1_gu")
    a.srd(20, 6, 7, 16384)
    a("s_cmp_ge_u32 s14, 2"); a("s_cbranch_scc1 k1_q_nophi")
    a("s_lshl_b32 s71, s66, 11"); a("s_lshl_b32 s72, s14, 10"); a("s_add_u32 s71, s71, s72")
    a(f"s_add_u32 m0, s72, {WPHI_LDS}"); a.nop(1)
    a("buffer_load_dwordx4 v3, s[20:23], s71 offen lds")
    a.lab("k1_q_nophi")
    for i in range(3):
        a("s_mul_i32 s71, s14, 3"); a(f"s_add_u32 s71, s71, {i}")
        a("s_cmp_lt_u32 s71, 13"); a(f"s_cbranch_scc0 k1_qa{i}")
        for w in range(4): a(f"s_mov_b32 s{36+4*i+w}, s{16+w}")
        a(f"s_lshl_b32 s{52+i}, s71, 10"); a(f"s_mov_b32 s{56+i}, {32*3072}")
        a(f"v_add_u32 v4, s{52+i}, v3")
        divmod_lane(a, 5, 6, 4, 416); kmap(a, 7, 5, 8)
        a("v_mul_u32_u24 v7, 3072, v7")
        a("v_lshrrev_b32 v8, 7, v6"); a("v_cmp_eq_u32 vcc, 3, v8"); a.nop(2); a("v_cndmask_b32 v8, v8, 0, vcc")
        a("v_lshl_add_u32 v7, v8, 10, v7"); a("v_and_b32 v6, 127, v6"); a("v_add_u32 v7, v7, v6")
        a("s_lshl_b32 s72, s66, 7"); a(f"v_add_u32 v{20+i}, s72, v7")
        a(f"s_branch k1_qb{i}")
        a.lab(f"k1_qa{i}")
        for w in range(4): a(f"s_mov_b32 s{36+4*i+w}, s{24+w}")
        a("s_sub_u32 s71, s71, 13"); a("s_min_u32 s71, s71, 7")
        a(f"s_lshl_b32 s{52+i}, s71, 10"); a(f"s_add_u32 s{52+i}, s{52+i}, {AOFF}"); a(f"s_movk_i32 s{56+i}, 1024")
        a("s_lshl_b32 s72, s68, 3"); a("s_add_u32 s72, s72, s71"); a("s_lshl_b32 s72, s72, 14"); a(f"v_add_u32 v{20+i}, s72, v3")
        a.lab(f"k1_qb{i}")
    a("v_lshrrev_b32 v4, 2, v2"); a("v_mul_u32_u24 v4, 416, v4"); a("v_and_b32 v5, 3, v2"); a("v_lshl_add_u32 v4, v5, 3, v4")
    a("s_lshl_b32 s71, s70, 6"); a("v_add_u32 v16, s71, v4"); a(f"v_add_u32 v17, {2*STG}, v16"); a(f"v_add_u32 v18, {4*STG}, v16")
    def qacc(part, hh): return ACC + (part * 2 + hh) * 8
    units = [(part * 128 + hh * 32, qacc(part, hh), part != 2) for part in range(3) for hh in range(2)]
    k1_main(a, units, 416, 3)
    stamp(a, 3)
    a.nop(8); a("s_barrier")
    a(f"v_lshlrev_b32 v3, 3, v2"); a(f"v_add_u32 v3, {WPHI_LDS}, v3"); a("s_lshl_b32 s71, s70, 10"); a("v_add_u32 v3, s71, v3")
    for hh in range(2): a(f"ds_read_b64_tr_b16 {vr(32+hh*2,2)}, v3 offset:{hh*512}")
    a("v_mov_b32 v10, 1.0")
    a("v_lshlrev_b32 v4, 4, v2")
    a("s_lshl_b32 s71, s66, 12"); a("s_lshl_b32 s72, s70, 11"); a("s_add_u32 s71, s71, s72")
    a("s_lshl_b32 s72, s73, 11"); a("s_add_u32 s71, s71, s72")
    a(f"s_add_u32 s71, s71, {PHI_OFF}"); a("v_add_u32 v4, s71, v4"); a("v_add_u32 v5, 0x8000, v4")
    a("s_waitcnt lgkmcnt(0)")
    def blocks(part):
        return [(qacc(part, hh) + b * 4, 32 + hh * 2, 64 + (hh * 2 + b) * 24, 48 + (hh * 2 + b) * 4, 50 + (hh * 2 + b) * 4) for hh in range(2) for b in range(2)]
    phi_multi(a, blocks(0), 10)
    for hh in range(2):
        for b in range(2): a(f"buffer_store_dwordx4 {vr(48+(hh*2+b)*4,4)}, v{4+b}, s[24:27], 0 offen offset:{hh*1024}")
    a("v_and_b32 v6, 15, v2"); a("v_lshrrev_b32 v7, 4, v2"); a("v_lshlrev_b32 v11, 2, v7"); a("v_sub_u32 v6, v6, v11")
    a("v_mov_b32 v12, 0x3f80"); a("v_mov_b32 v13, 0x3f800000"); a("v_mov_b32 v8, 0"); a("v_mov_b32 v9, 0")
    a("v_cmp_eq_u32 vcc, 0, v6"); a.nop(2); a("v_cndmask_b32 v8, v8, v12, vcc")
    a("v_cmp_eq_u32 vcc, 1, v6"); a.nop(2); a("v_cndmask_b32 v8, v8, v13, vcc")
    a("v_cmp_eq_u32 vcc, 2, v6"); a.nop(2); a("v_cndmask_b32 v9, v9, v12, vcc")
    a("v_cmp_eq_u32 vcc, 3, v6"); a.nop(2); a("v_cndmask_b32 v9, v9, v13, vcc")
    for i in range(4): a(f"v_mov_b32 v{12+i}, 0x3f803f80")
    a("v_and_b32 v6, 15, v2"); a("v_lshlrev_b32 v6, 7, v6"); a("v_lshl_add_u32 v6, v7, 5, v6")
    a("s_mul_i32 s71, s69, 8704"); a("s_lshl_b32 s72, s70, 12"); a("s_add_u32 s72, s72, s71"); a("v_add_u32 v6, s72, v6")
    a("s_lshl_b32 s72, s70, 8"); a("s_add_u32 s72, s72, s71"); a("s_add_u32 s72, s72, 8192")
    a("v_lshlrev_b32 v7, 5, v7"); a("v_add_u32 v7, s72, v7")
    phi_multi(a, blocks(1), 10)
    a.nop(1)
    for k in range(4):
        for sg in range(2): a(f"v_mfma_f32_16x16x16_bf16 {vr(64+(k*2+sg)*4,4)}, {vr(48+k*4+sg*2,2)}, v[8:9], 0")
    for hh in range(2):
        for b in range(2):
            va = qacc(2, hh) + b * 4
            a(f"v_cvt_pk_bf16_f32 v{112+hh*4+2*b}, v{va}, v{va+1}"); a(f"v_cvt_pk_bf16_f32 v{113+hh*4+2*b}, v{va+2}, v{va+3}")
    a.nop(1)
    for hh in range(2):
        for b in range(2):
            for sg in range(2):
                t = 64 + ((hh * 2 + b) * 2 + sg) * 4; o = 96 + (hh * 2 + sg) * 4 + 2 * b
                a(f"v_cvt_pk_bf16_f32 v{o}, v{t}, v{t+1}"); a(f"v_cvt_pk_bf16_f32 v{o+1}, v{t+2}, v{t+3}")
    a.nop(2)
    for hh in range(2):
        for sg in range(2):
            a(f"v_mfma_f32_16x16x32_bf16 {vr(120+(hh*2+sg)*4,4)}, {vr(96+(hh*2+sg)*4,4)}, {vr(112+hh*4,4)}, 0")
            a(f"v_mfma_f32_16x16x32_bf16 {vr(136+(hh*2+sg)*4,4)}, {vr(96+(hh*2+sg)*4,4)}, v[12:15], 0")
    a.nop(8)
    for hh in range(2):
        for sg in range(2):
            a(f"ds_write_b128 v6, {vr(120+(hh*2+sg)*4,4)} offset:{hh*2048+sg*16}")
            a(f"ds_write_b128 v7, {vr(136+(hh*2+sg)*4,4)} offset:{hh*128+sg*16}")
    a("s_waitcnt lgkmcnt(0)"); a("s_barrier")
    a("v_lshlrev_b32 v3, 2, v0")
    a("s_lshl_b32 s71, s66, 13"); a(f"s_add_u32 s71, s71, {KV_OFF}"); a("v_add_u32 v4, s71, v3")
    for i in range(4):
        for w in range(4): a(f"ds_read_b32 v{16+i*4+w}, v3 offset:{w*8704+i*2048}")
    for w in range(4): a(f"ds_read_b32 v{32+w}, v3 offset:{w*8704+8192}")
    a("s_waitcnt lgkmcnt(0)")
    for i in range(5):
        a(f"v_add_f32 v{16+i*4}, v{16+i*4}, v{17+i*4}"); a(f"v_add_f32 v{18+i*4}, v{18+i*4}, v{19+i*4}")
    for i in range(5): a(f"v_add_f32 v{16+i*4}, v{16+i*4}, v{18+i*4}")
    a("s_movk_i32 s72, 4096")
    a("buffer_atomic_add_f32 v16, v4, s[24:27], 0 offen"); a("buffer_atomic_add_f32 v20, v4, s[24:27], 0 offen offset:2048")
    a("buffer_atomic_add_f32 v24, v4, s[24:27], s72 offen"); a("buffer_atomic_add_f32 v28, v4, s[24:27], s72 offen offset:2048")
    a("s_cmp_ge_u32 s14, 2"); a("s_cbranch_scc1 k1_end")
    a("s_lshl_b32 s71, s66, 9"); a(f"s_add_u32 s71, s71, {Z_OFF}"); a("v_add_u32 v4, s71, v3")
    a("buffer_atomic_add_f32 v32, v4, s[24:27], 0 offen")
    a("s_branch k1_end")
    a.lab("k1_gu")
    for i in range(4):
        a("s_lshl_b32 s71, s14, 2"); a(f"s_add_u32 s71, s71, {i}")
        a("s_cmp_lt_u32 s71, 22"); a(f"s_cbranch_scc0 k1_ga{i}")
        a("s_cmp_ge_u32 s71, 11")
        for w in range(4): a(f"s_cselect_b32 s{36+4*i+w}, s{32+w}, s{28+w}")
        a("s_cselect_b32 s72, 11, 0"); a(f"s_lshl_b32 s{52+i}, s71, 10"); a("s_sub_u32 s71, s71, s72"); a("s_lshl_b32 s71, s71, 10")
        a(f"s_mov_b32 s{56+i}, {32*2752}")
        a("v_add_u32 v4, s71, v3")
        divmod_lane(a, 5, 6, 4, 352); kmap(a, 7, 5, 8)
        a("v_mul_u32_u24 v7, 2752, v7"); a("v_add_u32 v7, v7, v6")
        a("s_mul_i32 s72, s66, 352"); a(f"v_add_u32 v{20+i}, s72, v7")
        a(f"s_branch k1_gb{i}")
        a.lab(f"k1_ga{i}")
        for w in range(4): a(f"s_mov_b32 s{36+4*i+w}, s{24+w}")
        a("s_sub_u32 s71, s71, 22"); a("s_min_u32 s71, s71, 7")
        a(f"s_lshl_b32 s{52+i}, s71, 10"); a(f"s_add_u32 s{52+i}, s{52+i}, {AOFF}"); a(f"s_movk_i32 s{56+i}, 1024")
        a("s_lshl_b32 s72, s68, 3"); a("s_add_u32 s72, s72, s71"); a("s_lshl_b32 s72, s72, 14"); a(f"v_add_u32 v{20+i}, s72, v3")
        a.lab(f"k1_gb{i}")
    a("v_lshrrev_b32 v4, 2, v2"); a("v_mul_u32_u24 v4, 352, v4"); a("v_and_b32 v5, 3, v2"); a("v_lshl_add_u32 v4, v5, 3, v4")
    a("s_mul_i32 s71, s70, 192"); a("v_add_u32 v16, s71, v4"); a(f"v_add_u32 v17, {2*STG}, v16"); a(f"v_add_u32 v18, {4*STG}, v16")
    def gacc(R, p): return ACC + (p * 2 + R) * 8
    def gunits(NP): return [(R * 11264 + p * 32, gacc(R, p), True) for p in range(NP) for R in range(2)]
    a("s_cmp_eq_u32 s70, 1"); a("s_cbranch_scc1 k1_gu1")
    k1_main(a, gunits(6), 352, 4); a("s_branch k1_gu_epi")
    a.lab("k1_gu1"); k1_main(a, gunits(5), 352, 4)
    a.lab("k1_gu_epi"); stamp(a, 3)
    a.nop(8)
    a("v_and_b32 v4, 15, v2"); a("v_lshlrev_b32 v4, 4, v4")
    a("v_lshrrev_b32 v5, 5, v2"); a("v_lshl_add_u32 v4, v5, 8, v4"); a("v_bfe_u32 v5, v2, 4, 1"); a("v_lshl_add_u32 v4, v5, 3, v4")
    a("s_mul_i32 s71, s66, 11"); a("s_mul_i32 s72, s70, 6"); a("s_add_u32 s71, s71, s72")
    a("s_lshr_b32 s72, s73, 4"); a("s_mul_i32 s72, s72, 44032"); a("s_lshl_b32 s74, s71, 9"); a("s_add_u32 s72, s72, s74")
    a(f"s_add_u32 s72, s72, {H_OFF}"); a("v_add_u32 v4, s72, v4"); a("v_add_u32 v5, 44032, v4")
    for p in range(6):
        if p == 5: a("s_cmp_eq_u32 s70, 1"); a("s_cbranch_scc1 k1_end")
        a(f"s_add_u32 s72, s71, {p}"); a("s_cmp_ge_u32 s72, 86"); a("s_cbranch_scc1 k1_end")
        G = [gacc(0, p) + b * 4 for b in range(2)]; U = [gacc(1, p) + b * 4 for b in range(2)]; T = [48 + b * 8 for b in range(2)]
        for b in range(2):
            a(f"v_cvt_pk_bf16_f32 v{T[b]}, v{G[b]}, v{G[b]+1}"); a(f"v_cvt_pk_bf16_f32 v{T[b]+1}, v{G[b]+2}, v{G[b]+3}")
            a(f"v_cvt_pk_bf16_f32 v{T[b]+2}, v{U[b]}, v{U[b]+1}"); a(f"v_cvt_pk_bf16_f32 v{T[b]+3}, v{U[b]+2}, v{U[b]+3}")
        for b in range(2):
            for i in range(2):
                a(f"v_lshlrev_b32 v{G[b]+2*i}, 16, v{T[b]+i}"); a(f"v_and_b32 v{G[b]+2*i+1}, 0xffff0000, v{T[b]+i}")
                a(f"v_lshlrev_b32 v{U[b]+2*i}, 16, v{T[b]+2+i}"); a(f"v_and_b32 v{U[b]+2*i+1}, 0xffff0000, v{T[b]+2+i}")
        for b in range(2):
            for i in (0, 2): a(f"v_pk_mul_f32 {vr(T[b]+i,2)}, {vr(G[b]+i,2)}, s[{SL}:{SL+1}]")
        for b in range(2):
            for i in range(4): a(f"v_exp_f32 v{T[b]+i}, -v{T[b]+i}")
        a.nop(1)
        for b in range(2):
            for i in (0, 2): a(f"v_pk_add_f32 {vr(T[b]+i,2)}, {vr(T[b]+i,2)}, s[{S1}:{S1+1}]")
        for b in range(2):
            for i in range(4): a(f"v_rcp_f32 v{T[b]+i}, v{T[b]+i}")
        a.nop(1)
        for b in range(2):
            for i in (0, 2): a(f"v_pk_mul_f32 {vr(T[b]+i,2)}, {vr(T[b]+i,2)}, {vr(G[b]+i,2)}")
        for b in range(2):
            a(f"v_cvt_pk_bf16_f32 v{T[b]+4}, v{T[b]}, v{T[b]+1}"); a(f"v_cvt_pk_bf16_f32 v{T[b]+5}, v{T[b]+2}, v{T[b]+3}")
        for b in range(2):
            for i in range(2):
                a(f"v_lshlrev_b32 v{T[b]+2*i}, 16, v{T[b]+4+i}"); a(f"v_and_b32 v{T[b]+2*i+1}, 0xffff0000, v{T[b]+4+i}")
        for b in range(2):
            for i in (0, 2): a(f"v_pk_mul_f32 {vr(T[b]+i,2)}, {vr(T[b]+i,2)}, {vr(U[b]+i,2)}")
        for b in range(2):
            a(f"v_cvt_pk_bf16_f32 v{G[b]}, v{T[b]}, v{T[b]+1}"); a(f"v_cvt_pk_bf16_f32 v{G[b]+1}, v{T[b]+2}, v{T[b]+3}")
        for b in range(2):
            a(f"buffer_store_dwordx2 {vr(G[b],2)}, v{4+b}, s[24:27], 0 offen offset:{p*512}")
    a.lab("k1_end")
    if STAMP:
        a("s_cmp_ge_u32 s2, 256"); a("s_cbranch_scc1 k1_end2")
        stamp(a, 6); a("s_waitcnt vmcnt(0)"); stamp(a, 7); a("s_mov_b64 s[92:93], s[94:95]"); stamp_out(a, 24, 9, 0)
        a.lab("k1_end2")
    a("s_endpgm")

def main():
    a = Asm()
    hdr = open(f"cdna_kernels/{NAME}.s.ref").read().split("; Override launch")[0]
    import gen3
    launches = ["; @launch kernel=k0_kernel grid=(512,1,1) block=(64,1,1) lds=0",
                f"; @launch kernel=k1_kernel grid=(256,1,1) block=(512,1,1) lds={K1_LDS}", gen3.LAUNCH]
    out = hdr + "\n".join(launches) + "\n" + '.amdgcn_target "amdgcn-amd-amdhsa--gfx950"\n.text\n'
    gen_k0(a); gen_k1(a); gen3.gen(a)
    out += "\n".join(a.l) + "\n" + '.section .rodata,"a"\n' + kdesc("k0_kernel", 136) + kdesc("k1_kernel", 256) + gen3.desc()
    dst = sys.argv[1] if len(sys.argv) > 1 else f"cdna_kernels/{NAME}.s"
    open(dst, "w").write(out)
if __name__ == "__main__": main()
```

```python
from __main__ import stamp, stamp_out, STAMP, vr, kdesc, rb_pair, MB, H_OFF, PHI_OFF, KV_OFF, Z_OFF, WS_SIZE, LOG2E
RED = 17408
K3_LDS = 131072
LAUNCH = f"; @launch kernel=k3_kernel grid=(256,1,1) block=(512,1,1) lds={K3_LDS}"
def desc(): return kdesc("k3_kernel", 256)
ACC = 16
def acc(u, b): return ACC + (u * 4 + b) * 4
BF = 144

def gen(a):
    a.l.append(".p2align 8"); a.l.append(".globl k3_kernel"); a.l.append(".type k3_kernel,@function"); a.lab("k3_kernel")
    a("s_cmp_ge_u32 s2, 256"); a("s_cbranch_scc1 k3_end")
    stamp(a, 0)
    if STAMP: a("s_memrealtime s[94:95]")
    a("s_load_dwordx2 s[4:5], s[0:1], 0")
    a("s_load_dwordx2 s[6:7], s[0:1], 24")
    a("s_load_dwordx4 s[8:11], s[0:1], 56")
    a("s_load_dwordx2 s[12:13], s[0:1], 80")
    a("v_lshrrev_b32 v1, 6, v0"); a("v_and_b32 v2, 63, v0"); a.nop(1)
    a("v_readfirstlane_b32 s14, v1")
    a("s_and_b32 s3, s2, 7"); a("s_lshr_b32 s15, s2, 3")
    a("s_lshr_b32 s62, s15, 3"); a("s_lshl_b32 s3, s3, 2"); a("s_add_u32 s62, s62, s3"); a("s_lshl_b32 s62, s62, 6")
    a("s_and_b32 s63, s15, 7"); a("s_lshl_b32 s63, s63, 7")
    a(f"s_mov_b32 s61, {LOG2E:#x}")
    a("s_waitcnt lgkmcnt(0)")
    a.srd(16, 4, 5, 2 * MB); a.srd(20, 6, 7, 512 * 1024); a.srd(24, 12, 13, WS_SIZE)
    a.srd(28, 8, 9, 1376 * 1024); a.srd(32, 10, 11, 2 * MB)
    a("v_lshrrev_b32 v3, 3, v0"); a("v_add_u32 v3, s62, v3"); a("v_lshlrev_b32 v3, 10, v3")
    a("v_and_b32 v4, 7, v0"); a("v_lshl_add_u32 v3, v4, 4, v3"); a("v_add_u32 v3, s63, v3")
    a("buffer_load_dwordx4 v[12:15], v3, s[16:19], 0 offen")
    a("v_lshrrev_b32 v8, 2, v2"); a("v_lshlrev_b32 v8, 7, v8"); a("v_and_b32 v9, 3, v2"); a("v_lshl_add_u32 v8, v9, 3, v8")
    a("s_lshl_b32 s64, s14, 14"); a("v_add_u32 v8, s64, v8")
    a("v_bfe_u32 v9, v2, 3, 2")
    for u in range(4):
        a(f"v_xor_b32 v10, {u}, v9"); a(f"v_lshl_add_u32 v{4+u}, v10, 5, v8")
    a("v_bfe_u32 v8, v2, 1, 2"); a("v_bfe_u32 v9, v2, 4, 2"); a("v_xor_b32 v8, v8, v9"); a("v_lshlrev_b32 v8, 5, v8")
    a("v_and_b32 v9, 1, v2"); a("v_lshl_add_u32 v8, v9, 4, v8"); a("v_add_u32 v8, s63, v8")
    a("s_cmp_lt_u32 s14, 4"); a("s_cbranch_scc1 k3_swave")
    a("s_sub_u32 s69, s14, 4")
    a("v_lshrrev_b32 v9, 5, v2"); a("v_lshlrev_b32 v9, 3, v9"); a("v_bfe_u32 v10, v2, 3, 2"); a("v_add_u32 v9, v9, v10")
    a("v_lshl_add_u32 v8, v9, 10, v8")
    a("s_mul_i32 s65, s69, 11")
    a("v_lshlrev_b32 v9, 4, v2")
    a("s_lshr_b32 s66, s62, 4"); a("s_mul_i32 s66, s66, 44032"); a("s_lshl_b32 s67, s65, 10"); a("s_add_u32 s66, s66, s67")
    a(f"s_add_u32 s66, s66, {H_OFF}"); a("v_add_u32 v160, s66, v9")
    for b in range(1, 4): a(f"v_add_u32 v{160+b}, {b*44032}, v160")
    a("s_lshl_b32 s65, s65, 15")
    AR = 80
    def oload(t):
        a(f"s_movk_i32 s67, {t*1024}")
        for b in range(4):
            a(f"buffer_load_dwordx4 {vr(AR+(t%4)*16+b*4,4)}, v{160+b}, s[24:27], s67 offen")
        for q, dl in enumerate((0, 16, 4, 20)):
            a(f"s_add_u32 m0, s64, {(t%4)*4096+q*1024}")
            a(f"s_add_u32 s66, s65, {t*32768+dl*1024}")
            a(f"buffer_load_dwordx4 v8, s[28:31], s66 offen lds")
    NST = 11
    for t in range(3): oload(t)
    for t in range(NST):
        rem = min(2, NST - 1 - t)
        a(f"s_waitcnt vmcnt({8*rem})")
        if t == 0: stamp(a, 4)
        if t == 5: stamp(a, 5)
        if t == NST - 1: a("s_cmp_eq_u32 s14, 7"); a("s_cbranch_scc1 k3_red")
        for u in range(4):
            for j in range(2):
                a(f"ds_read_b64_tr_b16 {vr(BF+u*4+2*j,2)}, v{4+u} offset:{(t%4)*4096+j*2048}")
        if t + 3 < NST: oload(t + 3)
        for u in range(4):
            a(f"s_waitcnt lgkmcnt({6-2*u})")
            for b in range(4):
                c = "0" if t == 0 else vr(acc(u, b), 4)
                a(f"v_mfma_f32_16x16x32_bf16 {vr(acc(u,b),4)}, {vr(BF+u*4,4)}, {vr(AR+(t%4)*16+b*4,4)}, {c}")
    a("s_branch k3_red")
    a.lab("k3_swave")
    a("v_lshrrev_b32 v9, 3, v2"); a("v_lshl_add_u32 v8, v9, 10, v8")
    a("s_mov_b32 s65, s14")
    a("s_lshl_b32 s66, s65, 17")
    for p in range(4):
        for q in range(4):
            a(f"s_add_u32 m0, s64, {p*4096+q*1024}")
            a(f"s_add_u32 s67, s66, {p*32768+q*8192}")
            a(f"buffer_load_dwordx4 v8, s[20:23], s67 offen lds")
    a("v_lshlrev_b32 v9, 4, v2"); a("v_lshrrev_b32 v10, 4, v2")
    a("s_lshl_b32 s67, s65, 13"); a("s_lshl_b32 s68, s62, 11"); a("s_add_u32 s67, s67, s68"); a(f"s_add_u32 s67, s67, {PHI_OFF}"); a("v_add_u32 v240, s67, v9")
    for b in range(1, 4): a(f"v_add_u32 v{240+b}, {b*32768}, v240")
    a("v_and_b32 v9, 15, v2"); a("v_lshlrev_b32 v9, 7, v9"); a("v_lshl_add_u32 v9, v10, 5, v9")
    a("s_lshl_b32 s67, s65, 14"); a(f"s_add_u32 s67, s67, {KV_OFF}"); a("v_add_u32 v244, s67, v9")
    a("s_lshl_b32 s67, s65, 10"); a(f"s_add_u32 s67, s67, {Z_OFF}"); a("v_lshlrev_b32 v9, 5, v10"); a("v_add_u32 v245, s67, v9")
    LB = 80
    def sload(p):
        base = LB + (p % 2) * 64
        for hh in range(2):
            h = 2 * p + hh
            a(f"s_movk_i32 s67, {h*1024}")
            for b in range(4): a(f"buffer_load_dwordx4 {vr(base+hh*32+b*4,4)}, v{240+b}, s[24:27], s67 offen")
            a(f"s_movk_i32 s67, {h*2048}")
            for q in range(2): a(f"buffer_load_dwordx4 {vr(base+hh*32+16+q*4,4)}, v244, s[24:27], s67 offen offset:{q*16}")
            for q in range(2): a(f"buffer_load_dwordx4 {vr(base+hh*32+24+q*4,4)}, v245, s[24:27], 0 offen offset:{h*128+q*16}")
    sload(0); sload(1)
    OB = 208
    for p in range(4):
        base = LB + (p % 2) * 64
        a(f"s_waitcnt vmcnt({16 if p < 3 else 0})")
        if p == 0: stamp(a, 4)
        if p == 2: stamp(a, 5)
        for hh in range(2):
            hb = base + hh * 32
            for i in range(4): a(f"v_cvt_pk_bf16_f32 v{224+hh*8+i}, v{hb+16+2*i}, v{hb+17+2*i}")
            for i in range(4): a(f"v_cvt_pk_bf16_f32 v{228+hh*8+i}, v{hb+24+2*i}, v{hb+25+2*i}")
        a.nop(2)
        NT, DT = base + 16, base + 48
        for hh in range(2):
            hb = base + hh * 32
            for b in range(4):
                a(f"v_mfma_f32_16x16x32_bf16 {vr(NT+b*4,4)}, {vr(224+hh*8,4)}, {vr(hb+b*4,4)}, 0")
                a(f"v_mfma_f32_16x16x32_bf16 {vr(DT+b*4,4)}, {vr(228+hh*8,4)}, {vr(hb+b*4,4)}, 0")
            a.nop(8)
            for b in range(4): a(f"v_cvt_pk_bf16_f32 v{DT+b*4}, v{DT+b*4}, v{DT+b*4}")
            for b in range(4): a(f"v_cvt_pk_bf16_f32 v{DT+b*4+1}, v{NT+b*4}, v{NT+b*4+1}"); a(f"v_cvt_pk_bf16_f32 v{DT+b*4+2}, v{NT+b*4+2}, v{NT+b*4+3}")
            for b in range(4): a(f"v_lshlrev_b32 v{DT+b*4}, 16, v{DT+b*4}")
            for b in range(4): a(f"v_add_f32 v{DT+b*4}, 0x358637bd, v{DT+b*4}")
            for b in range(4): a(f"v_cvt_pk_bf16_f32 v{DT+b*4}, v{DT+b*4}, v{DT+b*4}")
            for b in range(4): a(f"v_lshlrev_b32 v{DT+b*4}, 16, v{DT+b*4}")
            for b in range(4): a(f"v_rcp_f32 v{DT+b*4}, v{DT+b*4}")
            for b in range(4):
                a(f"v_lshlrev_b32 v{NT+b*4}, 16, v{DT+b*4+1}"); a(f"v_and_b32 v{NT+b*4+1}, 0xffff0000, v{DT+b*4+1}")
                a(f"v_lshlrev_b32 v{NT+b*4+2}, 16, v{DT+b*4+2}"); a(f"v_and_b32 v{NT+b*4+3}, 0xffff0000, v{DT+b*4+2}")
            for b in range(4):
                for i in range(4): a(f"v_mul_f32 v{NT+b*4+i}, v{NT+b*4+i}, v{DT+b*4}")
            for b in range(4):
                a(f"v_cvt_pk_bf16_f32 v{OB+b*4+hh*2}, v{NT+b*4}, v{NT+b*4+1}"); a(f"v_cvt_pk_bf16_f32 v{OB+b*4+hh*2+1}, v{NT+b*4+2}, v{NT+b*4+3}")
        if p + 2 < 4: sload(p + 2)
        for u in range(4):
            for j in range(2):
                a(f"ds_read_b64_tr_b16 {vr(BF2+u*4+2*j,2)}, v{4+u} offset:{p*4096+j*2048}")
        for u in range(4):
            a(f"s_waitcnt lgkmcnt({6-2*u})")
            for b in range(4):
                c = "0" if p == 0 else vr(acc(u, b), 4)
                a(f"v_mfma_f32_16x16x32_bf16 {vr(acc(u,b),4)}, {vr(BF2+u*4,4)}, {vr(OB+b*4,4)}, {c}")
    a.lab("k3_red")
    stamp(a, 1)
    a.nop(8)
    a("v_and_b32 v8, 15, v2"); a("v_lshrrev_b32 v9, 4, v2"); a("v_and_b32 v10, 7, v2")
    a("v_lshlrev_b32 v8, 8, v8"); a("v_add_u32 v8, s64, v8")
    for u in range(4):
        a(f"v_add_u32 v11, {4*u}, v9"); a("v_xor_b32 v11, v11, v10"); a(f"v_lshl_add_u32 v{4+u}, v11, 4, v8")
    for u in range(4):
        for b in range(4):
            a(f"ds_write_b128 v{4+u}, {vr(acc(u,b),4)} offset:{b*4096}")
    a("s_waitcnt lgkmcnt(0)"); a("s_barrier")
    stamp(a, 2)
    a("v_lshrrev_b32 v8, 3, v0"); a("v_and_b32 v10, 7, v8"); a("v_lshlrev_b32 v8, 8, v8"); a("v_and_b32 v9, 7, v0"); a("v_lshlrev_b32 v9, 1, v9")
    a("v_xor_b32 v11, v9, v10"); a("v_lshl_add_u32 v4, v11, 4, v8")
    a("v_add_u32 v9, 1, v9"); a("v_xor_b32 v11, v9, v10"); a("v_lshl_add_u32 v5, v11, 4, v8")
    a("v_add_u32 v6, 65536, v4"); a("v_add_u32 v7, 65536, v5")
    for w in range(8):
        ww = w ^ 4
        for q in range(2):
            a(f"ds_read_b128 {vr(16+w*8+q*4,4)}, v{4+q+2*(ww>>2)} offset:{(ww&3)*16384}")
    a("s_waitcnt lgkmcnt(0)")
    for i in range(8):
        a(f"v_add_f32 v{16+i}, v{16+i}, v{24+i}"); a(f"v_add_f32 v{32+i}, v{32+i}, v{40+i}")
        a(f"v_add_f32 v{48+i}, v{48+i}, v{56+i}"); a(f"v_add_f32 v{64+i}, v{64+i}, v{72+i}")
    for i in range(8):
        a(f"v_add_f32 v{16+i}, v{16+i}, v{32+i}"); a(f"v_add_f32 v{48+i}, v{48+i}, v{64+i}")
    for i in range(0, 8, 2): rb_pair(a, 16 + i, 17 + i, 80); rb_pair(a, 48 + i, 49 + i, 80)
    for i in range(8): a(f"v_mul_f32 v{32+i}, s61, v{16+i}")
    for i in range(8): a(f"v_exp_f32 v{32+i}, -v{32+i}")
    a.nop(1)
    for i in range(8): a(f"v_add_f32 v{32+i}, 1.0, v{32+i}")
    for i in range(8): a(f"v_rcp_f32 v{32+i}, v{32+i}")
    a.nop(1)
    for i in range(8): a(f"v_mul_f32 v{32+i}, v{32+i}, v{16+i}")
    for i in range(0, 8, 2): rb_pair(a, 32 + i, 33 + i, 80)
    for i in range(8): a(f"v_mul_f32 v{32+i}, v{32+i}, v{48+i}")
    for i in range(0, 8, 2): rb_pair(a, 32 + i, 33 + i, 80)
    a("s_waitcnt vmcnt(0)")
    for i in range(4):
        a(f"v_lshlrev_b32 v{64+2*i}, 16, v{12+i}"); a(f"v_and_b32 v{65+2*i}, 0xffff0000, v{12+i}")
    for i in range(8): a(f"v_add_f32 v{32+i}, v{32+i}, v{64+i}")
    for i in range(4): a(f"v_cvt_pk_bf16_f32 v{12+i}, v{32+2*i}, v{33+2*i}")
    a("buffer_store_dwordx4 v[12:15], v3, s[32:35], 0 offen")
    if STAMP:
        stamp(a, 6); a("s_waitcnt vmcnt(0)"); stamp(a, 7); a("s_mov_b64 s[92:93], s[94:95]"); stamp_out(a, 24, 9, 1)
    a.lab("k3_end"); a("s_endpgm")
BF2 = 224
```

```python
import sys, re, os
NAME = "recurrent_scan__linear_kernel_hedgehog__glu_gated_swiglu__prompt"
MB = 1 << 20
XN_OFF, H_OFF, PHI_OFF, KV_OFF = 0, 2 * MB, 8 * MB, 12 * MB
Z_OFF = KV_OFF + 65536
WS_SIZE = 16 * MB
LOG2E = 0x3fb8aa3b
STAMP = bool(os.environ.get('STAMP'))
PREFETCH = int(os.environ.get('PREFETCH', '2'))

class Asm:
    def __init__(s): s.l = []
    def __call__(s, t):
        m = re.search(r"offset:(\d+)", t)
        if m and t.startswith("buffer_"): assert int(m.group(1)) <= 4095, t
        if m and t.startswith("ds_"): assert int(m.group(1)) <= 65535, t
        s.l.append("    " + t)
    def lab(s, t): s.l.append(t + ":")
    def nop(s, n):
        while n > 0:
            k = min(n, 16); s(f"s_nop {k-1}"); n -= k
    def srd(s, d, lo, hi, size):
        s(f"s_mov_b32 s{d}, s{lo}"); s(f"s_and_b32 s{d+1}, s{hi}, 0xffff")
        s(f"s_mov_b32 s{d+2}, {size}"); s(f"s_mov_b32 s{d+3}, 0x00020000")
    def head(s, name):
        s.l += [".p2align 8", f".globl {name}", f".type {name},@function"]; s.lab(name)

def stamp(a, i):
    if STAMP: a(f"s_memtime s[{76+2*i}:{77+2*i}]")
def stamp_out(a, srd, n, tag):
    if not STAMP: return
    a(f"s_memrealtime s[{76+2*n}:{77+2*n}]")
    a("s_waitcnt lgkmcnt(0)")
    a("s_lshl_b32 s74, s2, 3"); a("s_add_u32 s74, s74, s14"); a("s_lshl_b32 s74, s74, 7"); a(f"s_add_u32 s74, s74, {14*MB + tag*(1<<19)}")
    a("v_mov_b32 v250, s74")
    for i in range(2 * (n + 1)):
        a(f"v_mov_b32 v251, s{76+i}"); a(f"buffer_store_dword v251, v250, s[{srd}:{srd+3}], 0 offen offset:{4*i}")
def vr(a, n): return f"v[{a}:{a+n-1}]"
def kdesc(name, vgpr, sgpr=100):
    return f""".p2align 6
.amdhsa_kernel {name}
  .amdhsa_next_free_vgpr {vgpr}
  .amdhsa_next_free_sgpr {sgpr}
  .amdhsa_accum_offset {(vgpr+3)//4*4}
  .amdhsa_group_segment_fixed_size 0
  .amdhsa_kernarg_size 88
  .amdhsa_user_sgpr_count 2
  .amdhsa_user_sgpr_kernarg_segment_ptr 1
  .amdhsa_system_sgpr_workgroup_id_x 1
.end_amdhsa_kernel
"""
def rb_pair(a, x0, x1, t):
    a(f"v_cvt_pk_bf16_f32 v{t}, v{x0}, v{x1}")
    a(f"v_lshlrev_b32 v{x0}, 16, v{t}"); a(f"v_and_b32 v{x1}, 0xffff0000, v{t}")

def gen_k0(a):
    a.head("k0_kernel")
    a("s_cmp_ge_u32 s2, 512"); a("s_cbranch_scc1 k0_end")
    a("s_load_dwordx2 s[4:5], s[0:1], 0"); a("s_load_dwordx2 s[6:7], s[0:1], 80")
    a("v_and_b32 v1, 15, v0"); a("v_lshrrev_b32 v2, 4, v0")
    a("s_lshl_b32 s3, s2, 12")
    a("v_lshlrev_b32 v3, 10, v2"); a("v_lshl_add_u32 v3, v1, 4, v3"); a("v_add_u32 v3, s3, v3")
    a("s_waitcnt lgkmcnt(0)")
    a.srd(8, 4, 5, 2 * MB); a.srd(12, 6, 7, WS_SIZE)
    for c in range(4): a(f"buffer_load_dwordx4 {vr(4+4*c,4)}, v3, s[8:11], 0 offen offset:{256*c}")
    npf = 0
    if PREFETCH:
        a("s_load_dwordx2 s[20:21], s[0:1], 8")
        a("s_load_dwordx2 s[22:23], s[0:1], 24")
        a("s_load_dwordx4 s[24:27], s[0:1], 40")
        a("s_load_dwordx2 s[28:29], s[0:1], 56")
        a("s_and_b32 s30, s2, 7"); a("s_lshr_b32 s31, s2, 3")
        a("v_lshrrev_b32 v70, 3, v0"); a("s_lshl_b32 s32, s31, 3"); a("v_add_u32 v70, s32, v70")
        a("v_and_b32 v71, 7, v0")
        a("s_waitcnt lgkmcnt(0)")
        a.srd(36, 20, 21, 512 * 1536 * 2); a.srd(40, 24, 25, 512 * 1376 * 2); a.srd(44, 26, 27, 512 * 1376 * 2)
        a("v_lshrrev_b32 v72, 1, v71"); a("v_cmp_eq_u32 vcc, 3, v72"); a.nop(2); a("v_cndmask_b32 v72, v72, 0, vcc")
        a("v_lshlrev_b32 v72, 10, v72"); a("v_and_b32 v73, 1, v71"); a("v_lshl_add_u32 v72, v73, 6, v72")
        a("v_mul_u32_u24 v73, 3072, v70"); a("v_add_u32 v72, v72, v73")
        a("s_lshl_b32 s33, s30, 7")
        a("buffer_load_dword v128, v72, s[36:39], s33 offen")
        a("v_mul_u32_u24 v72, 48, v71"); a("v_mul_u32_u24 v73, 2752, v70"); a("v_add_u32 v72, v72, v73")
        a("s_mul_i32 s33, s30, 352")
        a("buffer_load_dword v129, v72, s[40:43], s33 offen"); a("buffer_load_dword v130, v72, s[44:47], s33 offen")
        npf = 3
        if PREFETCH > 1:
            a.srd(36, 28, 29, 1376 * 1024); a.srd(40, 22, 23, 512 * 1024)
            a("v_lshlrev_b32 v72, 7, v0"); a("s_mul_i32 s44, s31, 24576")
            for i in range(3):
                a(f"s_add_u32 s45, s44, {i*8192}"); a(f"buffer_load_dword v{132+i}, v72, s[36:39], s45 offen")
            a("s_lshl_b32 s44, s31, 13"); a("buffer_load_dword v135, v72, s[40:43], s44 offen")
            npf = 7
    a("s_cmp_ge_u32 s2, 68"); a("s_cbranch_scc1 k0_nz")
    for i in range(4): a(f"v_mov_b32 v{20+i}, 0")
    a("s_lshl_b32 s16, s2, 10"); a(f"s_add_u32 s16, s16, {KV_OFF}")
    a("v_lshlrev_b32 v24, 4, v0"); a("v_add_u32 v24, s16, v24")
    a("buffer_store_dwordx4 v[20:23], v24, s[12:15], 0 offen")
    a.lab("k0_nz")
    a(f"s_waitcnt vmcnt({npf})")
    for i in range(16):
        a(f"v_lshlrev_b32 v{32+2*i}, 16, v{4+i}"); a(f"v_and_b32 v{33+2*i}, 0xffff0000, v{4+i}")
    for i in range(16): a(f"v_add_f32 v{64+i}, v{32+2*i}, v{33+2*i}")
    n = 16
    while n > 1:
        for i in range(n // 2): a(f"v_add_f32 v{64+i}, v{64+i}, v{64+i+n//2}")
        n //= 2
    def red16(r):
        for sh in (8, 4, 2, 1):
            a.nop(2); a(f"v_add_f32_dpp v{r}, v{r}, v{r} row_ror:{sh} row_mask:0xf bank_mask:0xf")
    red16(64)
    a("v_mul_f32 v64, 0x3b000000, v64")
    a("v_cvt_pk_bf16_f32 v65, v64, v64"); a("v_lshlrev_b32 v65, 16, v65")
    for i in range(32): a(f"v_sub_f32 v{80+i}, v{32+i}, v64")
    for i in range(16): a(f"v_mul_f32 v{112+i}, v{80+2*i}, v{80+2*i}")
    for i in range(16): a(f"v_fmac_f32 v{112+i}, v{81+2*i}, v{81+2*i}")
    n = 16
    while n > 1:
        for i in range(n // 2): a(f"v_add_f32 v{112+i}, v{112+i}, v{112+i+n//2}")
        n //= 2
    red16(112)
    a("v_mul_f32 v66, 0x3b000000, v112")
    a("v_cvt_pk_bf16_f32 v66, v66, v66"); a("v_lshlrev_b32 v66, 16, v66")
    a("v_add_f32 v66, 0x3727c5ac, v66")
    a("v_cvt_pk_bf16_f32 v66, v66, v66"); a("v_lshlrev_b32 v66, 16, v66")
    a("v_sqrt_f32 v66, v66"); a.nop(1)
    a("v_cvt_pk_bf16_f32 v66, v66, v66"); a("v_lshlrev_b32 v66, 16, v66")
    a("v_rcp_f32 v66, v66"); a.nop(1)
    for i in range(32): a(f"v_sub_f32 v{80+i}, v{32+i}, v65")
    for i in range(16): a(f"v_cvt_pk_bf16_f32 v{112+i}, v{80+2*i}, v{81+2*i}")
    for i in range(16):
        a(f"v_lshlrev_b32 v{80+2*i}, 16, v{112+i}"); a(f"v_and_b32 v{81+2*i}, 0xffff0000, v{112+i}")
    for i in range(32): a(f"v_mul_f32 v{80+i}, v{80+i}, v66")
    for i in range(16): a(f"v_cvt_pk_bf16_f32 v{4+i}, v{80+2*i}, v{81+2*i}")
    a("s_lshr_b32 s16, s2, 2"); a("s_lshl_b32 s16, s16, 14"); a("s_and_b32 s17, s2, 3"); a("s_lshl_b32 s17, s17, 6"); a("s_add_u32 s16, s16, s17")
    a("v_lshrrev_b32 v20, 2, v1"); a("v_lshlrev_b32 v20, 10, v20"); a("v_and_b32 v21, 3, v1"); a("v_lshl_add_u32 v20, v21, 8, v20")
    a("v_lshl_add_u32 v20, v2, 4, v20"); a("v_add_u32 v20, s16, v20")
    for c in range(4):
        a(f"s_movk_i32 s17, {4096*c}")
        a(f"buffer_store_dwordx4 {vr(4+4*c,4)}, v20, s[12:15], s17 offen")
    a.lab("k0_end"); a("s_endpgm")

AOFF = 22528
STG = AOFF + 8192 + 1024
NSLOT = 5
WPHI_LDS = STG * NSLOT
K1_LDS = WPHI_LDS + 2048
SCR_LDS = AOFF + 8192
NST = 16
BR = 32
AR = 48
ACC = 160
SL, S1 = 62, 64

class LQ:
    def __init__(s, a): s.a = a; s.q = []
    def issue(s, tag, text): s.a(text); s.q.append(tag)
    def need(s, tags):
        idx = max((i for i, t in enumerate(s.q) if t in tags), default=-1)
        if idx < 0: return
        k = len(s.q) - 1 - idx
        s.a(f"s_waitcnt lgkmcnt({min(k,15)})")
        s.q = s.q[idx + 1:] if k <= 15 else s.q[len(s.q) - 15:]

def k1_dma(a, stage, nd):
    sl = stage % NSLOT
    for i in range(nd):
        a(f"s_add_u32 m0, s{52+i}, {sl*STG}")
        a(f"s_mul_i32 s60, s{56+i}, {stage}")
        a(f"buffer_load_dwordx4 v{20+i}, s[{36+4*i}:{39+4*i}], s60 offen lds")

def k1_main(a, units, RS, nd):
    lq = LQ(a)
    n = len(units)
    seq = [(st, i) for st in range(NST) for i in range(n)]
    def rd(k):
        st, i = seq[k]
        sl = st % NSLOT
        if i == 0:
            for b in range(2):
                lq.issue(('A', st, b), f"ds_read_b128 {vr(AR+((st&1)*2+b)*4,4)}, v{27+sl//2} offset:{(sl%2)*STG+b*1024}")
        off = units[i][0]; br = BR + (k % 4) * 4
        base = 16 + sl // 2; o2 = (sl % 2) * STG
        lq.issue(('B', k), f"ds_read_b64_tr_b16 {vr(br,2)}, v{base} offset:{o2+off}")
        lq.issue(('B', k), f"ds_read_b64_tr_b16 {vr(br+2,2)}, v{base} offset:{o2+off+16*RS}")
    for st in range(4): k1_dma(a, st, nd)
    stamp(a, 5)
    a(f"s_waitcnt vmcnt({2*nd})"); a("s_barrier")
    stamp(a, 1)
    for k in range(3): rd(k)
    for k, (st, i) in enumerate(seq):
        if i == 0:
            if st > 0:
                rem = max(0, min(st + 3, NST - 1) - (st + 1))
                a(f"s_waitcnt vmcnt({rem*nd})"); a("s_barrier")
            if st == 8: stamp(a, 2)
            if st + 4 < NST: k1_dma(a, st + 4, nd)
        if k + 3 < len(seq): rd(k + 3)
        lq.need({('B', k), ('A', st, 0), ('A', st, 1)})
        off, ac, tr = units[i]; br = BR + (k % 4) * 4
        for b in range(2):
            ar = AR + ((st & 1) * 2 + b) * 4; d = ac + b * 4
            c = "0" if st == 0 else vr(d, 4)
            if tr: a(f"v_mfma_f32_16x16x32_bf16 {vr(d,4)}, {vr(br,4)}, {vr(ar,4)}, {c}")
            else: a(f"v_mfma_f32_16x16x32_bf16 {vr(d,4)}, {vr(ar,4)}, {vr(br,4)}, {c}")

def phi_multi(a, blocks, ones):
    n = len(blocks)
    B = [dict(ac=ac, wp=wp, t0=T, p=T+2, e=T+6, f=T+10, mx=T+14, nm=T+15, c=T+16, d=T+17, s=T+18, op=op, om=om) for ac, wp, T, op, om in blocks]
    def each(fn):
        for b in B: fn(b)
    each(lambda b: (a(f"v_cvt_pk_bf16_f32 v{b['t0']}, v{b['ac']}, v{b['ac']+1}"), a(f"v_cvt_pk_bf16_f32 v{b['t0']+1}, v{b['ac']+2}, v{b['ac']+3}")))
    a.nop(1)
    each(lambda b: a(f"v_mfma_f32_16x16x16_bf16 {vr(b['p'],4)}, {vr(b['wp'],2)}, {vr(b['t0'],2)}, 0"))
    a.nop(8)
    each(lambda b: (a(f"v_cvt_pk_bf16_f32 v{b['t0']}, v{b['p']}, v{b['p']+1}"), a(f"v_cvt_pk_bf16_f32 v{b['t0']+1}, v{b['p']+2}, v{b['p']+3}")))
    each(lambda b: (a(f"v_lshlrev_b32 v{b['p']}, 16, v{b['t0']}"), a(f"v_and_b32 v{b['p']+1}, 0xffff0000, v{b['t0']}"),
                    a(f"v_lshlrev_b32 v{b['p']+2}, 16, v{b['t0']+1}"), a(f"v_and_b32 v{b['p']+3}, 0xffff0000, v{b['t0']+1}")))
    each(lambda b: (a(f"v_max3_f32 v{b['mx']}, v{b['p']}, v{b['p']+1}, v{b['p']+2}"), a(f"v_max3_f32 v{b['nm']}, -v{b['p']}, -v{b['p']+1}, -v{b['p']+2}")))
    each(lambda b: (a(f"v_max_f32 v{b['mx']}, v{b['mx']}, v{b['p']+3}"), a(f"v_max_f32_e64 v{b['nm']}, v{b['nm']}, -v{b['p']+3}")))
    pad = max(0, 2 - (n - 1))
    a.nop(1 if n > 1 else 2)
    each(lambda b: a(f"v_permlane32_swap_b32 v{b['mx']}, v{b['nm']}"))
    each(lambda b: a(f"v_max_f32 v{b['c']}, v{b['mx']}, v{b['nm']}"))
    each(lambda b: a(f"v_mov_b32 v{b['d']}, v{b['c']}"))
    a.nop(pad)
    each(lambda b: a(f"v_permlane16_swap_b32 v{b['c']}, v{b['d']}"))
    each(lambda b: a(f"v_max_f32 v{b['mx']}, v{b['c']}, v{b['d']}"))
    each(lambda b: a(f"v_mov_b32 v{b['nm']}, v{b['mx']}"))
    a.nop(pad)
    each(lambda b: a(f"v_permlane32_swap_b32 v{b['mx']}, v{b['nm']}"))
    each(lambda b: a(f"v_pk_mul_f32 {vr(b['mx'],2)}, {vr(b['mx'],2)}, s[{SL}:{SL+1}]"))
    for i in (0, 2):
        each(lambda b: a(f"v_pk_fma_f32 {vr(b['e']+i,2)}, {vr(b['p']+i,2)}, s[{SL}:{SL+1}], {vr(b['mx'],2)} op_sel_hi:[1,1,0] neg_lo:[0,0,1] neg_hi:[0,0,1]"))
        each(lambda b: a(f"v_pk_fma_f32 {vr(b['f']+i,2)}, {vr(b['p']+i,2)}, s[{SL}:{SL+1}], {vr(b['mx'],2)} op_sel:[0,0,1] op_sel_hi:[1,1,1] neg_lo:[1,0,1] neg_hi:[1,0,1]"))
    for i in range(4):
        each(lambda b: (a(f"v_exp_f32 v{b['e']+i}, v{b['e']+i}"), a(f"v_exp_f32 v{b['f']+i}, v{b['f']+i}")))
    a.nop(1)
    each(lambda b: (a(f"v_pk_add_f32 {vr(b['mx'],2)}, {vr(b['e'],2)}, {vr(b['e']+2,2)}"), a(f"v_pk_add_f32 {vr(b['c'],2)}, {vr(b['f'],2)}, {vr(b['f']+2,2)}")))
    each(lambda b: (a(f"v_add_f32 v{b['mx']}, v{b['mx']}, v{b['nm']}"), a(f"v_add_f32 v{b['c']}, v{b['c']}, v{b['d']}")))
    a.nop(1)
    each(lambda b: (a(f"v_mfma_f32_16x16x4_f32 {vr(b['p'],4)}, v{ones}, v{b['mx']}, 0"), a(f"v_mfma_f32_16x16x4_f32 {vr(b['s'],4)}, v{ones}, v{b['c']}, 0")))
    a.nop(10)
    each(lambda b: (a(f"v_rcp_f32 v{b['mx']}, v{b['p']}"), a(f"v_rcp_f32 v{b['c']}, v{b['s']}")))
    a.nop(1)
    for i in (0, 2):
        each(lambda b: (a(f"v_pk_mul_f32 {vr(b['e']+i,2)}, {vr(b['e']+i,2)}, {vr(b['mx'],2)} op_sel_hi:[1,0]"),
                        a(f"v_pk_mul_f32 {vr(b['f']+i,2)}, {vr(b['f']+i,2)}, {vr(b['c'],2)} op_sel_hi:[1,0]")))
    each(lambda b: (a(f"v_cvt_pk_bf16_f32 v{b['op']}, v{b['e']}, v{b['e']+1}"), a(f"v_cvt_pk_bf16_f32 v{b['op']+1}, v{b['e']+2}, v{b['e']+3}"),
                    a(f"v_cvt_pk_bf16_f32 v{b['om']}, v{b['f']}, v{b['f']+1}"), a(f"v_cvt_pk_bf16_f32 v{b['om']+1}, v{b['f']+2}, v{b['f']+3}")))

def divmod_lane(a, dst_q, dst_r, src, d):
    magic = (1 << 24) // d + 1
    for o in range(0, 14336, 16): assert (o * magic) >> 24 == o // d, (d, o)
    a(f"v_mul_u32_u24 v{dst_q}, {magic}, v{src}"); a(f"v_lshrrev_b32 v{dst_q}, 24, v{dst_q}")
    a(f"v_mul_u32_u24 v{dst_r}, {d}, v{dst_q}"); a(f"v_sub_u32 v{dst_r}, v{src}, v{dst_r}")

def kmap(a, dst, sr, t):
    a(f"v_bfe_u32 v{dst}, v{sr}, 2, 2"); a(f"v_lshlrev_b32 v{dst}, 3, v{dst}")
    a(f"v_lshrrev_b32 v{t}, 4, v{sr}"); a(f"v_lshl_add_u32 v{dst}, v{t}, 2, v{dst}")
    a(f"v_and_b32 v{t}, 3, v{sr}"); a(f"v_add_u32 v{dst}, v{dst}, v{t}")

def gen_k1(a):
    a.head("k1_kernel")
    a("s_cmp_ge_u32 s2, 256"); a("s_cbranch_scc1 k1_end")
    stamp(a, 0)
    if STAMP: a("s_memrealtime s[94:95]")
    a("s_load_dwordx4 s[4:7], s[0:1], 8")
    a("s_load_dwordx4 s[8:11], s[0:1], 40")
    a("s_load_dwordx2 s[12:13], s[0:1], 80")
    a("v_lshrrev_b32 v1, 6, v0"); a("v_and_b32 v2, 63, v0"); a.nop(1)
    a("v_readfirstlane_b32 s14, v1")
    a("s_and_b32 s66, s2, 7"); a("s_lshr_b32 s15, s2, 3")
    a("s_and_b32 s67, s15, 1")
    a("s_lshr_b32 s68, s15, 1")
    a("s_and_b32 s69, s14, 3")
    a("s_lshr_b32 s70, s14, 2")
    a(f"s_mov_b32 s{SL}, {LOG2E:#x}"); a(f"s_mov_b32 s{SL+1}, {LOG2E:#x}"); a(f"s_mov_b32 s{S1}, 1.0"); a(f"s_mov_b32 s{S1+1}, 1.0")
    a("s_lshl_b32 s71, s68, 7"); a("s_lshl_b32 s72, s69, 5"); a("s_add_u32 s73, s71, s72")
    a("v_lshlrev_b32 v3, 4, v2")
    a("s_waitcnt lgkmcnt(0)")
    stamp(a, 4)
    a.srd(24, 12, 13, WS_SIZE)
    a.srd(16, 4, 5, 512 * 1536 * 2)
    a.srd(28, 8, 9, 512 * 1376 * 2); a.srd(32, 10, 11, 512 * 1376 * 2)
    a("s_lshl_b32 s71, s69, 11"); a(f"s_add_u32 s71, s71, {AOFF}"); a("v_add_u32 v27, s71, v3")
    a(f"v_add_u32 v28, {2*STG}, v27"); a(f"v_add_u32 v29, {4*STG}, v27")
    a("s_cmp_eq_u32 s67, 1"); a("s_cbranch_scc1 k1_gu")
    a.srd(20, 6, 7, 16384)
    a("s_cmp_ge_u32 s14, 2"); a("s_cbranch_scc1 k1_q_nophi")
    a("s_lshl_b32 s71, s66, 11"); a("s_lshl_b32 s72, s14, 10"); a("s_add_u32 s71, s71, s72")
    a(f"s_add_u32 m0, s72, {WPHI_LDS}"); a.nop(1)
    a("buffer_load_dwordx4 v3, s[20:23], s71 offen lds")
    a.lab("k1_q_nophi")
    for i in range(3):
        a("s_mul_i32 s71, s14, 3"); a(f"s_add_u32 s71, s71, {i}")
        a("s_cmp_lt_u32 s71, 13"); a(f"s_cbranch_scc0 k1_qa{i}")
        for w in range(4): a(f"s_mov_b32 s{36+4*i+w}, s{16+w}")
        a(f"s_lshl_b32 s{52+i}, s71, 10"); a(f"s_mov_b32 s{56+i}, {32*3072}")
        a(f"v_add_u32 v4, s{52+i}, v3")
        divmod_lane(a, 5, 6, 4, 416); kmap(a, 7, 5, 8)
        a("v_mul_u32_u24 v7, 3072, v7")
        a("v_lshrrev_b32 v8, 7, v6"); a("v_cmp_eq_u32 vcc, 3, v8"); a.nop(2); a("v_cndmask_b32 v8, v8, 0, vcc")
        a("v_lshl_add_u32 v7, v8, 10, v7"); a("v_and_b32 v6, 127, v6"); a("v_add_u32 v7, v7, v6")
        a("s_lshl_b32 s72, s66, 7"); a(f"v_add_u32 v{20+i}, s72, v7")
        a(f"s_branch k1_qb{i}")
        a.lab(f"k1_qa{i}")
        for w in range(4): a(f"s_mov_b32 s{36+4*i+w}, s{24+w}")
        a("s_sub_u32 s71, s71, 13")
        a(f"s_lshl_b32 s{52+i}, s71, 10"); a(f"s_add_u32 s{52+i}, s{52+i}, {AOFF}"); a(f"s_movk_i32 s{56+i}, 1024")
        a("s_lshl_b32 s72, s68, 3"); a("s_add_u32 s72, s72, s71"); a("s_lshl_b32 s72, s72, 14")
        a("s_cmp_lt_u32 s71, 8"); a("s_cselect_b32 s72, s72, 0x40000000"); a(f"v_add_u32 v{20+i}, s72, v3")
        a(f"s_cselect_b32 s{61 if False else 52+i}, s{52+i}, {SCR_LDS}"); a(f"s_cselect_b32 s{75 if False else 56+i}, s{56+i}, 0")
        a.lab(f"k1_qb{i}")
    a("v_lshrrev_b32 v4, 2, v2"); a("v_mul_u32_u24 v4, 416, v4"); a("v_and_b32 v5, 3, v2"); a("v_lshl_add_u32 v4, v5, 3, v4")
    a("s_lshl_b32 s71, s70, 6"); a("v_add_u32 v16, s71, v4"); a(f"v_add_u32 v17, {2*STG}, v16"); a(f"v_add_u32 v18, {4*STG}, v16")
    def qacc(part, hh): return ACC + (part * 2 + hh) * 8
    units = [(part * 128 + hh * 32, qacc(part, hh), part != 2) for part in range(3) for hh in range(2)]
    k1_main(a, units, 416, 3)
    stamp(a, 3)
    a.nop(8); a("s_barrier")
    a(f"v_lshlrev_b32 v3, 3, v2"); a(f"v_add_u32 v3, {WPHI_LDS}, v3"); a("s_lshl_b32 s71, s70, 10"); a("v_add_u32 v3, s71, v3")
    for hh in range(2): a(f"ds_read_b64_tr_b16 {vr(32+hh*2,2)}, v3 offset:{hh*512}")
    a("v_mov_b32 v10, 1.0")
    a("v_lshlrev_b32 v4, 4, v2")
    a("s_lshl_b32 s71, s66, 12"); a("s_lshl_b32 s72, s70, 11"); a("s_add_u32 s71, s71, s72")
    a("s_lshl_b32 s72, s73, 11"); a("s_add_u32 s71, s71, s72")
    a(f"s_add_u32 s71, s71, {PHI_OFF}"); a("v_add_u32 v4, s71, v4"); a("v_add_u32 v5, 0x8000, v4")
    a("s_waitcnt lgkmcnt(0)")
    def blocks(part):
        return [(qacc(part, hh) + b * 4, 32 + hh * 2, 64 + (hh * 2 + b) * 24, 48 + (hh * 2 + b) * 4, 50 + (hh * 2 + b) * 4) for hh in range(2) for b in range(2)]
    phi_multi(a, blocks(0), 10)
    for hh in range(2):
        for b in range(2): a(f"buffer_store_dwordx4 {vr(48+(hh*2+b)*4,4)}, v{4+b}, s[24:27], 0 offen offset:{hh*1024}")
    a("v_and_b32 v6, 15, v2"); a("v_lshrrev_b32 v7, 4, v2"); a("v_lshlrev_b32 v11, 2, v7"); a("v_sub_u32 v6, v6, v11")
    a("v_mov_b32 v12, 0x3f80"); a("v_mov_b32 v13, 0x3f800000"); a("v_mov_b32 v8, 0"); a("v_mov_b32 v9, 0")
    a("v_cmp_eq_u32 vcc, 0, v6"); a.nop(2); a("v_cndmask_b32 v8, v8, v12, vcc")
    a("v_cmp_eq_u32 vcc, 1, v6"); a.nop(2); a("v_cndmask_b32 v8, v8, v13, vcc")
    a("v_cmp_eq_u32 vcc, 2, v6"); a.nop(2); a("v_cndmask_b32 v9, v9, v12, vcc")
    a("v_cmp_eq_u32 vcc, 3, v6"); a.nop(2); a("v_cndmask_b32 v9, v9, v13, vcc")
    for i in range(4): a(f"v_mov_b32 v{12+i}, 0x3f803f80")
    a("v_and_b32 v6, 15, v2"); a("v_lshlrev_b32 v6, 7, v6"); a("v_lshl_add_u32 v6, v7, 5, v6")
    a("s_mul_i32 s71, s69, 8704"); a("s_lshl_b32 s72, s70, 12"); a("s_add_u32 s72, s72, s71"); a("v_add_u32 v6, s72, v6")
    a("s_lshl_b32 s72, s70, 8"); a("s_add_u32 s72, s72, s71"); a("s_add_u32 s72, s72, 8192")
    a("v_lshlrev_b32 v7, 5, v7"); a("v_add_u32 v7, s72, v7")
    phi_multi(a, blocks(1), 10)
    a.nop(1)
    for k in range(4):
        for sg in range(2): a(f"v_mfma_f32_16x16x16_bf16 {vr(64+(k*2+sg)*4,4)}, {vr(48+k*4+sg*2,2)}, v[8:9], 0")
    for hh in range(2):
        for b in range(2):
            va = qacc(2, hh) + b * 4
            a(f"v_cvt_pk_bf16_f32 v{112+hh*4+2*b}, v{va}, v{va+1}"); a(f"v_cvt_pk_bf16_f32 v{113+hh*4+2*b}, v{va+2}, v{va+3}")
    a.nop(1)
    for hh in range(2):
        for b in range(2):
            for sg in range(2):
                t = 64 + ((hh * 2 + b) * 2 + sg) * 4; o = 96 + (hh * 2 + sg) * 4 + 2 * b
                a(f"v_cvt_pk_bf16_f32 v{o}, v{t}, v{t+1}"); a(f"v_cvt_pk_bf16_f32 v{o+1}, v{t+2}, v{t+3}")
    a.nop(2)
    for hh in range(2):
        for sg in range(2):
            a(f"v_mfma_f32_16x16x32_bf16 {vr(120+(hh*2+sg)*4,4)}, {vr(96+(hh*2+sg)*4,4)}, {vr(112+hh*4,4)}, 0")
            a(f"v_mfma_f32_16x16x32_bf16 {vr(136+(hh*2+sg)*4,4)}, {vr(96+(hh*2+sg)*4,4)}, v[12:15], 0")
    a.nop(8)
    for hh in range(2):
        for sg in range(2):
            a(f"ds_write_b128 v6, {vr(120+(hh*2+sg)*4,4)} offset:{hh*2048+sg*16}")
            a(f"ds_write_b128 v7, {vr(136+(hh*2+sg)*4,4)} offset:{hh*128+sg*16}")
    a("s_waitcnt lgkmcnt(0)"); a("s_barrier")
    a("v_lshlrev_b32 v3, 2, v0")
    a("s_lshl_b32 s71, s66, 13"); a(f"s_add_u32 s71, s71, {KV_OFF}"); a("v_add_u32 v4, s71, v3")
    for i in range(4):
        for w in range(4): a(f"ds_read_b32 v{16+i*4+w}, v3 offset:{w*8704+i*2048}")
    for w in range(4): a(f"ds_read_b32 v{32+w}, v3 offset:{w*8704+8192}")
    a("s_waitcnt lgkmcnt(0)")
    for i in range(5):
        a(f"v_add_f32 v{16+i*4}, v{16+i*4}, v{17+i*4}"); a(f"v_add_f32 v{18+i*4}, v{18+i*4}, v{19+i*4}")
    for i in range(5): a(f"v_add_f32 v{16+i*4}, v{16+i*4}, v{18+i*4}")
    a("s_movk_i32 s72, 4096")
    a("buffer_atomic_add_f32 v16, v4, s[24:27], 0 offen"); a("buffer_atomic_add_f32 v20, v4, s[24:27], 0 offen offset:2048")
    a("buffer_atomic_add_f32 v24, v4, s[24:27], s72 offen"); a("buffer_atomic_add_f32 v28, v4, s[24:27], s72 offen offset:2048")
    a("s_cmp_ge_u32 s14, 2"); a("s_cbranch_scc1 k1_end")
    a("s_lshl_b32 s71, s66, 9"); a(f"s_add_u32 s71, s71, {Z_OFF}"); a("v_add_u32 v4, s71, v3")
    a("buffer_atomic_add_f32 v32, v4, s[24:27], 0 offen")
    a("s_branch k1_end")
    a.lab("k1_gu")
    for i in range(4):
        a("s_lshl_b32 s71, s14, 2"); a(f"s_add_u32 s71, s71, {i}")
        a("s_cmp_lt_u32 s71, 22"); a(f"s_cbranch_scc0 k1_ga{i}")
        a("s_cmp_ge_u32 s71, 11")
        for w in range(4): a(f"s_cselect_b32 s{36+4*i+w}, s{32+w}, s{28+w}")
        a("s_cselect_b32 s72, 11, 0"); a(f"s_lshl_b32 s{52+i}, s71, 10"); a("s_sub_u32 s71, s71, s72"); a("s_lshl_b32 s71, s71, 10")
        a(f"s_mov_b32 s{56+i}, {32*2752}")
        a("v_add_u32 v4, s71, v3")
        divmod_lane(a, 5, 6, 4, 352); kmap(a, 7, 5, 8)
        a("v_mul_u32_u24 v7, 2752, v7"); a("v_add_u32 v7, v7, v6")
        a("s_mul_i32 s72, s66, 352"); a(f"v_add_u32 v{20+i}, s72, v7")
        a(f"s_branch k1_gb{i}")
        a.lab(f"k1_ga{i}")
        for w in range(4): a(f"s_mov_b32 s{36+4*i+w}, s{24+w}")
        a("s_sub_u32 s71, s71, 22")
        a(f"s_lshl_b32 s{52+i}, s71, 10"); a(f"s_add_u32 s{52+i}, s{52+i}, {AOFF}"); a(f"s_movk_i32 s{56+i}, 1024")
        a("s_lshl_b32 s72, s68, 3"); a("s_add_u32 s72, s72, s71"); a("s_lshl_b32 s72, s72, 14")
        a("s_cmp_lt_u32 s71, 8"); a("s_cselect_b32 s72, s72, 0x40000000"); a(f"v_add_u32 v{20+i}, s72, v3")
        a(f"s_cselect_b32 s{61 if False else 52+i}, s{52+i}, {SCR_LDS}"); a(f"s_cselect_b32 s{75 if False else 56+i}, s{56+i}, 0")
        a.lab(f"k1_gb{i}")
    a("v_lshrrev_b32 v4, 2, v2"); a("v_mul_u32_u24 v4, 352, v4"); a("v_and_b32 v5, 3, v2"); a("v_lshl_add_u32 v4, v5, 3, v4")
    a("s_mul_i32 s71, s70, 192"); a("v_add_u32 v16, s71, v4"); a(f"v_add_u32 v17, {2*STG}, v16"); a(f"v_add_u32 v18, {4*STG}, v16")
    def gacc(R, p): return ACC + (p * 2 + R) * 8
    def gunits(NP): return [(R * 11264 + p * 32, gacc(R, p), True) for p in range(NP) for R in range(2)]
    a("s_cmp_eq_u32 s70, 1"); a("s_cbranch_scc1 k1_gu1")
    k1_main(a, gunits(6), 352, 4); a("s_branch k1_gu_epi")
    a.lab("k1_gu1"); k1_main(a, gunits(5), 352, 4)
    a.lab("k1_gu_epi"); stamp(a, 3)
    a.nop(8)
    a("v_and_b32 v4, 15, v2"); a("v_lshlrev_b32 v4, 4, v4")
    a("v_lshrrev_b32 v5, 5, v2"); a("v_lshl_add_u32 v4, v5, 8, v4"); a("v_bfe_u32 v5, v2, 4, 1"); a("v_lshl_add_u32 v4, v5, 3, v4")
    a("s_mul_i32 s71, s66, 11"); a("s_mul_i32 s72, s70, 6"); a("s_add_u32 s71, s71, s72")
    a("s_lshr_b32 s72, s73, 4"); a("s_mul_i32 s72, s72, 44032"); a("s_lshl_b32 s74, s71, 9"); a("s_add_u32 s72, s72, s74")
    a(f"s_add_u32 s72, s72, {H_OFF}"); a("v_add_u32 v4, s72, v4"); a("v_add_u32 v5, 44032, v4")
    for p in range(6):
        if p == 5: a("s_cmp_eq_u32 s70, 1"); a("s_cbranch_scc1 k1_end")
        a(f"s_add_u32 s72, s71, {p}"); a("s_cmp_ge_u32 s72, 86"); a("s_cbranch_scc1 k1_end")
        G = [gacc(0, p) + b * 4 for b in range(2)]; U = [gacc(1, p) + b * 4 for b in range(2)]; T = [48 + b * 8 for b in range(2)]
        for b in range(2):
            a(f"v_cvt_pk_bf16_f32 v{T[b]}, v{G[b]}, v{G[b]+1}"); a(f"v_cvt_pk_bf16_f32 v{T[b]+1}, v{G[b]+2}, v{G[b]+3}")
            a(f"v_cvt_pk_bf16_f32 v{T[b]+2}, v{U[b]}, v{U[b]+1}"); a(f"v_cvt_pk_bf16_f32 v{T[b]+3}, v{U[b]+2}, v{U[b]+3}")
        for b in range(2):
            for i in range(2):
                a(f"v_lshlrev_b32 v{G[b]+2*i}, 16, v{T[b]+i}"); a(f"v_and_b32 v{G[b]+2*i+1}, 0xffff0000, v{T[b]+i}")
                a(f"v_lshlrev_b32 v{U[b]+2*i}, 16, v{T[b]+2+i}"); a(f"v_and_b32 v{U[b]+2*i+1}, 0xffff0000, v{T[b]+2+i}")
        for b in range(2):
            for i in (0, 2): a(f"v_pk_mul_f32 {vr(T[b]+i,2)}, {vr(G[b]+i,2)}, s[{SL}:{SL+1}]")
        for b in range(2):
            for i in range(4): a(f"v_exp_f32 v{T[b]+i}, -v{T[b]+i}")
        a.nop(1)
        for b in range(2):
            for i in (0, 2): a(f"v_pk_add_f32 {vr(T[b]+i,2)}, {vr(T[b]+i,2)}, s[{S1}:{S1+1}]")
        for b in range(2):
            for i in range(4): a(f"v_rcp_f32 v{T[b]+i}, v{T[b]+i}")
        a.nop(1)
        for b in range(2):
            for i in (0, 2): a(f"v_pk_mul_f32 {vr(T[b]+i,2)}, {vr(T[b]+i,2)}, {vr(G[b]+i,2)}")
        for b in range(2):
            a(f"v_cvt_pk_bf16_f32 v{T[b]+4}, v{T[b]}, v{T[b]+1}"); a(f"v_cvt_pk_bf16_f32 v{T[b]+5}, v{T[b]+2}, v{T[b]+3}")
        for b in range(2):
            for i in range(2):
                a(f"v_lshlrev_b32 v{T[b]+2*i}, 16, v{T[b]+4+i}"); a(f"v_and_b32 v{T[b]+2*i+1}, 0xffff0000, v{T[b]+4+i}")
        for b in range(2):
            for i in (0, 2): a(f"v_pk_mul_f32 {vr(T[b]+i,2)}, {vr(T[b]+i,2)}, {vr(U[b]+i,2)}")
        for b in range(2):
            a(f"v_cvt_pk_bf16_f32 v{G[b]}, v{T[b]}, v{T[b]+1}"); a(f"v_cvt_pk_bf16_f32 v{G[b]+1}, v{T[b]+2}, v{T[b]+3}")
        for b in range(2):
            a(f"buffer_store_dwordx2 {vr(G[b],2)}, v{4+b}, s[24:27], 0 offen offset:{p*512}")
    a.lab("k1_end")
    if STAMP:
        a("s_cmp_ge_u32 s2, 256"); a("s_cbranch_scc1 k1_end2")
        stamp(a, 6); a("s_waitcnt vmcnt(0)"); stamp(a, 7); a("s_mov_b64 s[92:93], s[94:95]"); stamp_out(a, 24, 9, 0)
        a.lab("k1_end2")
    a("s_endpgm")

def main():
    a = Asm()
    hdr = open(f"cdna_kernels/{NAME}.s.ref").read().split("; Override launch")[0]
    import gen3
    launches = ["; @launch kernel=k0_kernel grid=(512,1,1) block=(64,1,1) lds=0",
                f"; @launch kernel=k1_kernel grid=(256,1,1) block=(512,1,1) lds={K1_LDS}", gen3.LAUNCH]
    out = hdr + "\n".join(launches) + "\n" + '.amdgcn_target "amdgcn-amd-amdhsa--gfx950"\n.text\n'
    gen_k0(a); gen_k1(a); gen3.gen(a)
    out += "\n".join(a.l) + "\n" + '.section .rodata,"a"\n' + kdesc("k0_kernel", 136) + kdesc("k1_kernel", 256) + gen3.desc()
    dst = sys.argv[1] if len(sys.argv) > 1 else f"cdna_kernels/{NAME}.s"
    open(dst, "w").write(out)
if __name__ == "__main__": main()
```

```python
import sys, re, os
NAME = "recurrent_scan__linear_kernel_hedgehog__glu_gated_swiglu__prompt"
MB = 1 << 20
XN_OFF, H_OFF, PHI_OFF, KV_OFF = 0, 2 * MB, 8 * MB, 12 * MB
Z_OFF = KV_OFF + 65536
WS_SIZE = 16 * MB
LOG2E = 0x3fb8aa3b
STAMP = bool(os.environ.get('STAMP'))
PREFETCH = int(os.environ.get('PREFETCH', '2'))

class Asm:
    def __init__(s): s.l = []
    def __call__(s, t):
        m = re.search(r"offset:(\d+)", t)
        if m and t.startswith("buffer_"): assert int(m.group(1)) <= 4095, t
        if m and t.startswith("ds_"): assert int(m.group(1)) <= 65535, t
        if re.match(r"buffer_store_dwordx[24] ", t): t += " sc1"
        s.l.append("    " + t)
    def lab(s, t): s.l.append(t + ":")
    def nop(s, n):
        while n > 0:
            k = min(n, 16); s(f"s_nop {k-1}"); n -= k
    def srd(s, d, lo, hi, size):
        s(f"s_mov_b32 s{d}, s{lo}"); s(f"s_and_b32 s{d+1}, s{hi}, 0xffff")
        s(f"s_mov_b32 s{d+2}, {size}"); s(f"s_mov_b32 s{d+3}, 0x00020000")
    def head(s, name):
        s.l += [".p2align 8", f".globl {name}", f".type {name},@function"]; s.lab(name)

def stamp(a, i):
    if STAMP: a(f"s_memtime s[{76+2*i}:{77+2*i}]")
def stamp_out(a, srd, n, tag):
    if not STAMP: return
    a(f"s_memrealtime s[{76+2*n}:{77+2*n}]")
    a("s_waitcnt lgkmcnt(0)")
    a("s_lshl_b32 s74, s2, 3"); a("s_add_u32 s74, s74, s14"); a("s_lshl_b32 s74, s74, 7"); a(f"s_add_u32 s74, s74, {14*MB + tag*(1<<19)}")
    a("v_mov_b32 v250, s74")
    for i in range(2 * (n + 1)):
        a(f"v_mov_b32 v251, s{76+i}"); a(f"buffer_store_dword v251, v250, s[{srd}:{srd+3}], 0 offen offset:{4*i}")
def vr(a, n): return f"v[{a}:{a+n-1}]"
def kdesc(name, vgpr, sgpr=100):
    return f""".p2align 6
.amdhsa_kernel {name}
  .amdhsa_next_free_vgpr {vgpr}
  .amdhsa_next_free_sgpr {sgpr}
  .amdhsa_accum_offset {(vgpr+3)//4*4}
  .amdhsa_group_segment_fixed_size 0
  .amdhsa_kernarg_size 88
  .amdhsa_user_sgpr_count 2
  .amdhsa_user_sgpr_kernarg_segment_ptr 1
  .amdhsa_system_sgpr_workgroup_id_x 1
.end_amdhsa_kernel
"""
def rb_pair(a, x0, x1, t):
    a(f"v_cvt_pk_bf16_f32 v{t}, v{x0}, v{x1}")
    a(f"v_lshlrev_b32 v{x0}, 16, v{t}"); a(f"v_and_b32 v{x1}, 0xffff0000, v{t}")

def gen_k0(a):
    a.head("k0_kernel")
    a("s_cmp_ge_u32 s2, 512"); a("s_cbranch_scc1 k0_end")
    a("s_load_dwordx2 s[4:5], s[0:1], 0"); a("s_load_dwordx2 s[6:7], s[0:1], 80")
    a("v_and_b32 v1, 15, v0"); a("v_lshrrev_b32 v2, 4, v0")
    a("s_lshl_b32 s3, s2, 12")
    a("v_lshlrev_b32 v3, 10, v2"); a("v_lshl_add_u32 v3, v1, 4, v3"); a("v_add_u32 v3, s3, v3")
    a("s_waitcnt lgkmcnt(0)")
    a.srd(8, 4, 5, 2 * MB); a.srd(12, 6, 7, WS_SIZE)
    for c in range(4): a(f"buffer_load_dwordx4 {vr(4+4*c,4)}, v3, s[8:11], 0 offen offset:{256*c}")
    npf = 0
    if PREFETCH:
        a("s_load_dwordx2 s[20:21], s[0:1], 8")
        a("s_load_dwordx2 s[22:23], s[0:1], 24")
        a("s_load_dwordx4 s[24:27], s[0:1], 40")
        a("s_load_dwordx2 s[28:29], s[0:1], 56")
        a("s_and_b32 s30, s2, 7"); a("s_lshr_b32 s31, s2, 3")
        a("v_lshrrev_b32 v70, 3, v0"); a("s_lshl_b32 s32, s31, 3"); a("v_add_u32 v70, s32, v70")
        a("v_and_b32 v71, 7, v0")
        a("s_waitcnt lgkmcnt(0)")
        a.srd(36, 20, 21, 512 * 1536 * 2); a.srd(40, 24, 25, 512 * 1376 * 2); a.srd(44, 26, 27, 512 * 1376 * 2)
        a("v_lshrrev_b32 v72, 1, v71"); a("v_cmp_eq_u32 vcc, 3, v72"); a.nop(2); a("v_cndmask_b32 v72, v72, 0, vcc")
        a("v_lshlrev_b32 v72, 10, v72"); a("v_and_b32 v73, 1, v71"); a("v_lshl_add_u32 v72, v73, 6, v72")
        a("v_mul_u32_u24 v73, 3072, v70"); a("v_add_u32 v72, v72, v73")
        a("s_lshl_b32 s33, s30, 7")
        a("buffer_load_dword v128, v72, s[36:39], s33 offen")
        a("v_mul_u32_u24 v72, 48, v71"); a("v_mul_u32_u24 v73, 2752, v70"); a("v_add_u32 v72, v72, v73")
        a("s_mul_i32 s33, s30, 352")
        a("buffer_load_dword v129, v72, s[40:43], s33 offen"); a("buffer_load_dword v130, v72, s[44:47], s33 offen")
        npf = 3
        if PREFETCH > 1:
            a.srd(36, 28, 29, 1376 * 1024); a.srd(40, 22, 23, 512 * 1024)
            a("v_lshlrev_b32 v72, 7, v0"); a("s_mul_i32 s44, s31, 24576")
            for i in range(3):
                a(f"s_add_u32 s45, s44, {i*8192}"); a(f"buffer_load_dword v{132+i}, v72, s[36:39], s45 offen")
            a("s_lshl_b32 s44, s31, 13"); a("buffer_load_dword v135, v72, s[40:43], s44 offen")
            npf = 7
    a("s_cmp_ge_u32 s2, 68"); a("s_cbranch_scc1 k0_nz")
    for i in range(4): a(f"v_mov_b32 v{20+i}, 0")
    a("s_lshl_b32 s16, s2, 10"); a(f"s_add_u32 s16, s16, {KV_OFF}")
    a("v_lshlrev_b32 v24, 4, v0"); a("v_add_u32 v24, s16, v24")
    a("buffer_store_dwordx4 v[20:23], v24, s[12:15], 0 offen")
    a.lab("k0_nz")
    a(f"s_waitcnt vmcnt({npf})")
    for i in range(16):
        a(f"v_lshlrev_b32 v{32+2*i}, 16, v{4+i}"); a(f"v_and_b32 v{33+2*i}, 0xffff0000, v{4+i}")
    for i in range(16): a(f"v_add_f32 v{64+i}, v{32+2*i}, v{33+2*i}")
    n = 16
    while n > 1:
        for i in range(n // 2): a(f"v_add_f32 v{64+i}, v{64+i}, v{64+i+n//2}")
        n //= 2
    def red16(r):
        for sh in (8, 4, 2, 1):
            a.nop(2); a(f"v_add_f32_dpp v{r}, v{r}, v{r} row_ror:{sh} row_mask:0xf bank_mask:0xf")
    red16(64)
    a("v_mul_f32 v64, 0x3b000000, v64")
    a("v_cvt_pk_bf16_f32 v65, v64, v64"); a("v_lshlrev_b32 v65, 16, v65")
    for i in range(32): a(f"v_sub_f32 v{80+i}, v{32+i}, v64")
    for i in range(16): a(f"v_mul_f32 v{112+i}, v{80+2*i}, v{80+2*i}")
    for i in range(16): a(f"v_fmac_f32 v{112+i}, v{81+2*i}, v{81+2*i}")
    n = 16
    while n > 1:
        for i in range(n // 2): a(f"v_add_f32 v{112+i}, v{112+i}, v{112+i+n//2}")
        n //= 2
    red16(112)
    a("v_mul_f32 v66, 0x3b000000, v112")
    a("v_cvt_pk_bf16_f32 v66, v66, v66"); a("v_lshlrev_b32 v66, 16, v66")
    a("v_add_f32 v66, 0x3727c5ac, v66")
    a("v_cvt_pk_bf16_f32 v66, v66, v66"); a("v_lshlrev_b32 v66, 16, v66")
    a("v_sqrt_f32 v66, v66"); a.nop(1)
    a("v_cvt_pk_bf16_f32 v66, v66, v66"); a("v_lshlrev_b32 v66, 16, v66")
    a("v_rcp_f32 v66, v66"); a.nop(1)
    for i in range(32): a(f"v_sub_f32 v{80+i}, v{32+i}, v65")
    for i in range(16): a(f"v_cvt_pk_bf16_f32 v{112+i}, v{80+2*i}, v{81+2*i}")
    for i in range(16):
        a(f"v_lshlrev_b32 v{80+2*i}, 16, v{112+i}"); a(f"v_and_b32 v{81+2*i}, 0xffff0000, v{112+i}")
    for i in range(32): a(f"v_mul_f32 v{80+i}, v{80+i}, v66")
    for i in range(16): a(f"v_cvt_pk_bf16_f32 v{4+i}, v{80+2*i}, v{81+2*i}")
    a("s_lshr_b32 s16, s2, 2"); a("s_lshl_b32 s16, s16, 14"); a("s_and_b32 s17, s2, 3"); a("s_lshl_b32 s17, s17, 6"); a("s_add_u32 s16, s16, s17")
    a("v_lshrrev_b32 v20, 2, v1"); a("v_lshlrev_b32 v20, 10, v20"); a("v_and_b32 v21, 3, v1"); a("v_lshl_add_u32 v20, v21, 8, v20")
    a("v_lshl_add_u32 v20, v2, 4, v20"); a("v_add_u32 v20, s16, v20")
    for c in range(4):
        a(f"s_movk_i32 s17, {4096*c}")
        a(f"buffer_store_dwordx4 {vr(4+4*c,4)}, v20, s[12:15], s17 offen")
    a.lab("k0_end"); a("s_endpgm")

AOFF = 22528
STG = AOFF + 8192 + 1024
NSLOT = 5
WPHI_LDS = STG * NSLOT
K1_LDS = WPHI_LDS + 2048
SCR_LDS = AOFF + 8192
NST = 16
BR = 32
AR = 48
ACC = 160
SL, S1 = 62, 64

class LQ:
    def __init__(s, a): s.a = a; s.q = []
    def issue(s, tag, text): s.a(text); s.q.append(tag)
    def need(s, tags):
        idx = max((i for i, t in enumerate(s.q) if t in tags), default=-1)
        if idx < 0: return
        k = len(s.q) - 1 - idx
        s.a(f"s_waitcnt lgkmcnt({min(k,15)})")
        s.q = s.q[idx + 1:] if k <= 15 else s.q[len(s.q) - 15:]

def k1_dma(a, stage, nd):
    sl = stage % NSLOT
    for i in range(nd):
        a(f"s_add_u32 m0, s{52+i}, {sl*STG}")
        a(f"s_mul_i32 s60, s{56+i}, {stage}")
        a(f"buffer_load_dwordx4 v{20+i}, s[{36+4*i}:{39+4*i}], s60 offen lds")

def k1_main(a, units, RS, nd):
    lq = LQ(a)
    n = len(units)
    seq = [(st, i) for st in range(NST) for i in range(n)]
    def rd(k):
        st, i = seq[k]
        sl = st % NSLOT
        if i == 0:
            for b in range(2):
                lq.issue(('A', st, b), f"ds_read_b128 {vr(AR+((st&1)*2+b)*4,4)}, v{27+sl//2} offset:{(sl%2)*STG+b*1024}")
        off = units[i][0]; br = BR + (k % 4) * 4
        base = 16 + sl // 2; o2 = (sl % 2) * STG
        lq.issue(('B', k), f"ds_read_b64_tr_b16 {vr(br,2)}, v{base} offset:{o2+off}")
        lq.issue(('B', k), f"ds_read_b64_tr_b16 {vr(br+2,2)}, v{base} offset:{o2+off+16*RS}")
    for st in range(4): k1_dma(a, st, nd)
    stamp(a, 5)
    a(f"s_waitcnt vmcnt({2*nd})"); a("s_barrier")
    stamp(a, 1)
    for k in range(3): rd(k)
    for k, (st, i) in enumerate(seq):
        if i == 0:
            if st > 0:
                rem = max(0, min(st + 3, NST - 1) - (st + 1))
                a(f"s_waitcnt vmcnt({rem*nd})"); a("s_barrier")
            if st == 8: stamp(a, 2)
            if st + 4 < NST: k1_dma(a, st + 4, nd)
        if k + 3 < len(seq): rd(k + 3)
        lq.need({('B', k), ('A', st, 0), ('A', st, 1)})
        off, ac, tr = units[i]; br = BR + (k % 4) * 4
        for b in range(2):
            ar = AR + ((st & 1) * 2 + b) * 4; d = ac + b * 4
            c = "0" if st == 0 else vr(d, 4)
            if tr: a(f"v_mfma_f32_16x16x32_bf16 {vr(d,4)}, {vr(br,4)}, {vr(ar,4)}, {c}")
            else: a(f"v_mfma_f32_16x16x32_bf16 {vr(d,4)}, {vr(ar,4)}, {vr(br,4)}, {c}")

def phi_multi(a, blocks, ones):
    n = len(blocks)
    B = [dict(ac=ac, wp=wp, t0=T, p=T+2, e=T+6, f=T+10, mx=T+14, nm=T+15, c=T+16, d=T+17, s=T+18, op=op, om=om) for ac, wp, T, op, om in blocks]
    def each(fn):
        for b in B: fn(b)
    each(lambda b: (a(f"v_cvt_pk_bf16_f32 v{b['t0']}, v{b['ac']}, v{b['ac']+1}"), a(f"v_cvt_pk_bf16_f32 v{b['t0']+1}, v{b['ac']+2}, v{b['ac']+3}")))
    a.nop(1)
    each(lambda b: a(f"v_mfma_f32_16x16x16_bf16 {vr(b['p'],4)}, {vr(b['wp'],2)}, {vr(b['t0'],2)}, 0"))
    a.nop(8)
    each(lambda b: (a(f"v_cvt_pk_bf16_f32 v{b['t0']}, v{b['p']}, v{b['p']+1}"), a(f"v_cvt_pk_bf16_f32 v{b['t0']+1}, v{b['p']+2}, v{b['p']+3}")))
    each(lambda b: (a(f"v_lshlrev_b32 v{b['p']}, 16, v{b['t0']}"), a(f"v_and_b32 v{b['p']+1}, 0xffff0000, v{b['t0']}"),
                    a(f"v_lshlrev_b32 v{b['p']+2}, 16, v{b['t0']+1}"), a(f"v_and_b32 v{b['p']+3}, 0xffff0000, v{b['t0']+1}")))
    each(lambda b: (a(f"v_max3_f32 v{b['mx']}, v{b['p']}, v{b['p']+1}, v{b['p']+2}"), a(f"v_max3_f32 v{b['nm']}, -v{b['p']}, -v{b['p']+1}, -v{b['p']+2}")))
    each(lambda b: (a(f"v_max_f32 v{b['mx']}, v{b['mx']}, v{b['p']+3}"), a(f"v_max_f32_e64 v{b['nm']}, v{b['nm']}, -v{b['p']+3}")))
    pad = max(0, 2 - (n - 1))
    a.nop(1 if n > 1 else 2)
    each(lambda b: a(f"v_permlane32_swap_b32 v{b['mx']}, v{b['nm']}"))
    each(lambda b: a(f"v_max_f32 v{b['c']}, v{b['mx']}, v{b['nm']}"))
    each(lambda b: a(f"v_mov_b32 v{b['d']}, v{b['c']}"))
    a.nop(pad)
    each(lambda b: a(f"v_permlane16_swap_b32 v{b['c']}, v{b['d']}"))
    each(lambda b: a(f"v_max_f32 v{b['mx']}, v{b['c']}, v{b['d']}"))
    each(lambda b: a(f"v_mov_b32 v{b['nm']}, v{b['mx']}"))
    a.nop(pad)
    each(lambda b: a(f"v_permlane32_swap_b32 v{b['mx']}, v{b['nm']}"))
    each(lambda b: a(f"v_pk_mul_f32 {vr(b['mx'],2)}, {vr(b['mx'],2)}, s[{SL}:{SL+1}]"))
    for i in (0, 2):
        each(lambda b: a(f"v_pk_fma_f32 {vr(b['e']+i,2)}, {vr(b['p']+i,2)}, s[{SL}:{SL+1}], {vr(b['mx'],2)} op_sel_hi:[1,1,0] neg_lo:[0,0,1] neg_hi:[0,0,1]"))
        each(lambda b: a(f"v_pk_fma_f32 {vr(b['f']+i,2)}, {vr(b['p']+i,2)}, s[{SL}:{SL+1}], {vr(b['mx'],2)} op_sel:[0,0,1] op_sel_hi:[1,1,1] neg_lo:[1,0,1] neg_hi:[1,0,1]"))
    for i in range(4):
        each(lambda b: (a(f"v_exp_f32 v{b['e']+i}, v{b['e']+i}"), a(f"v_exp_f32 v{b['f']+i}, v{b['f']+i}")))
    a.nop(1)
    each(lambda b: (a(f"v_pk_add_f32 {vr(b['mx'],2)}, {vr(b['e'],2)}, {vr(b['e']+2,2)}"), a(f"v_pk_add_f32 {vr(b['c'],2)}, {vr(b['f'],2)}, {vr(b['f']+2,2)}")))
    each(lambda b: (a(f"v_add_f32 v{b['mx']}, v{b['mx']}, v{b['nm']}"), a(f"v_add_f32 v{b['c']}, v{b['c']}, v{b['d']}")))
    a.nop(1)
    each(lambda b: (a(f"v_mfma_f32_16x16x4_f32 {vr(b['p'],4)}, v{ones}, v{b['mx']}, 0"), a(f"v_mfma_f32_16x16x4_f32 {vr(b['s'],4)}, v{ones}, v{b['c']}, 0")))
    a.nop(10)
    each(lambda b: (a(f"v_rcp_f32 v{b['mx']}, v{b['p']}"), a(f"v_rcp_f32 v{b['c']}, v{b['s']}")))
    a.nop(1)
    for i in (0, 2):
        each(lambda b: (a(f"v_pk_mul_f32 {vr(b['e']+i,2)}, {vr(b['e']+i,2)}, {vr(b['mx'],2)} op_sel_hi:[1,0]"),
                        a(f"v_pk_mul_f32 {vr(b['f']+i,2)}, {vr(b['f']+i,2)}, {vr(b['c'],2)} op_sel_hi:[1,0]")))
    each(lambda b: (a(f"v_cvt_pk_bf16_f32 v{b['op']}, v{b['e']}, v{b['e']+1}"), a(f"v_cvt_pk_bf16_f32 v{b['op']+1}, v{b['e']+2}, v{b['e']+3}"),
                    a(f"v_cvt_pk_bf16_f32 v{b['om']}, v{b['f']}, v{b['f']+1}"), a(f"v_cvt_pk_bf16_f32 v{b['om']+1}, v{b['f']+2}, v{b['f']+3}")))

def divmod_lane(a, dst_q, dst_r, src, d):
    magic = (1 << 24) // d + 1
    for o in range(0, 14336, 16): assert (o * magic) >> 24 == o // d, (d, o)
    a(f"v_mul_u32_u24 v{dst_q}, {magic}, v{src}"); a(f"v_lshrrev_b32 v{dst_q}, 24, v{dst_q}")
    a(f"v_mul_u32_u24 v{dst_r}, {d}, v{dst_q}"); a(f"v_sub_u32 v{dst_r}, v{src}, v{dst_r}")

def kmap(a, dst, sr, t):
    a(f"v_bfe_u32 v{dst}, v{sr}, 2, 2"); a(f"v_lshlrev_b32 v{dst}, 3, v{dst}")
    a(f"v_lshrrev_b32 v{t}, 4, v{sr}"); a(f"v_lshl_add_u32 v{dst}, v{t}, 2, v{dst}")
    a(f"v_and_b32 v{t}, 3, v{sr}"); a(f"v_add_u32 v{dst}, v{dst}, v{t}")

def gen_k1(a):
    a.head("k1_kernel")
    a("s_cmp_ge_u32 s2, 256"); a("s_cbranch_scc1 k1_end")
    stamp(a, 0)
    if STAMP: a("s_memrealtime s[94:95]")
    a("s_load_dwordx4 s[4:7], s[0:1], 8")
    a("s_load_dwordx4 s[8:11], s[0:1], 40")
    a("s_load_dwordx2 s[12:13], s[0:1], 80")
    a("v_lshrrev_b32 v1, 6, v0"); a("v_and_b32 v2, 63, v0"); a.nop(1)
    a("v_readfirstlane_b32 s14, v1")
    a("s_and_b32 s66, s2, 7"); a("s_lshr_b32 s15, s2, 3")
    a("s_and_b32 s67, s15, 1")
    a("s_lshr_b32 s68, s15, 1")
    a("s_and_b32 s69, s14, 3")
    a("s_lshr_b32 s70, s14, 2")
    a(f"s_mov_b32 s{SL}, {LOG2E:#x}"); a(f"s_mov_b32 s{SL+1}, {LOG2E:#x}"); a(f"s_mov_b32 s{S1}, 1.0"); a(f"s_mov_b32 s{S1+1}, 1.0")
    a("s_lshl_b32 s71, s68, 7"); a("s_lshl_b32 s72, s69, 5"); a("s_add_u32 s73, s71, s72")
    a("v_lshlrev_b32 v3, 4, v2")
    a("s_waitcnt lgkmcnt(0)")
    stamp(a, 4)
    a.srd(24, 12, 13, WS_SIZE)
    a.srd(16, 4, 5, 512 * 1536 * 2)
    a.srd(28, 8, 9, 512 * 1376 * 2); a.srd(32, 10, 11, 512 * 1376 * 2)
    a("s_lshl_b32 s71, s69, 11"); a(f"s_add_u32 s71, s71, {AOFF}"); a("v_add_u32 v27, s71, v3")
    a(f"v_add_u32 v28, {2*STG}, v27"); a(f"v_add_u32 v29, {4*STG}, v27")
    a("s_cmp_eq_u32 s67, 1"); a("s_cbranch_scc1 k1_gu")
    a.srd(20, 6, 7, 16384)
    a("s_cmp_ge_u32 s14, 2"); a("s_cbranch_scc1 k1_q_nophi")
    a("s_lshl_b32 s71, s66, 11"); a("s_lshl_b32 s72, s14, 10"); a("s_add_u32 s71, s71, s72")
    a(f"s_add_u32 m0, s72, {WPHI_LDS}"); a.nop(1)
    a("buffer_load_dwordx4 v3, s[20:23], s71 offen lds")
    a.lab("k1_q_nophi")
    for i in range(3):
        a("s_mul_i32 s71, s14, 3"); a(f"s_add_u32 s71, s71, {i}")
        a("s_cmp_lt_u32 s71, 13"); a(f"s_cbranch_scc0 k1_qa{i}")
        for w in range(4): a(f"s_mov_b32 s{36+4*i+w}, s{16+w}")
        a(f"s_lshl_b32 s{52+i}, s71, 10"); a(f"s_mov_b32 s{56+i}, {32*3072}")
        a(f"v_add_u32 v4, s{52+i}, v3")
        divmod_lane(a, 5, 6, 4, 416); kmap(a, 7, 5, 8)
        a("v_mul_u32_u24 v7, 3072, v7")
        a("v_lshrrev_b32 v8, 7, v6"); a("v_cmp_eq_u32 vcc, 3, v8"); a.nop(2); a("v_cndmask_b32 v8, v8, 0, vcc")
        a("v_lshl_add_u32 v7, v8, 10, v7"); a("v_and_b32 v6, 127, v6"); a("v_add_u32 v7, v7, v6")
        a("s_lshl_b32 s72, s66, 7"); a(f"v_add_u32 v{20+i}, s72, v7")
        a(f"s_branch k1_qb{i}")
        a.lab(f"k1_qa{i}")
        for w in range(4): a(f"s_mov_b32 s{36+4*i+w}, s{24+w}")
        a("s_sub_u32 s71, s71, 13")
        a(f"s_lshl_b32 s{52+i}, s71, 10"); a(f"s_add_u32 s{52+i}, s{52+i}, {AOFF}"); a(f"s_movk_i32 s{56+i}, 1024")
        a("s_lshl_b32 s72, s68, 3"); a("s_add_u32 s72, s72, s71"); a("s_lshl_b32 s72, s72, 14")
        a("s_cmp_lt_u32 s71, 8"); a("s_cselect_b32 s72, s72, 0x40000000"); a(f"v_add_u32 v{20+i}, s72, v3")
        a(f"s_cselect_b32 s{61 if False else 52+i}, s{52+i}, {SCR_LDS}"); a(f"s_cselect_b32 s{75 if False else 56+i}, s{56+i}, 0")
        a.lab(f"k1_qb{i}")
    a("v_lshrrev_b32 v4, 2, v2"); a("v_mul_u32_u24 v4, 416, v4"); a("v_and_b32 v5, 3, v2"); a("v_lshl_add_u32 v4, v5, 3, v4")
    a("s_lshl_b32 s71, s70, 6"); a("v_add_u32 v16, s71, v4"); a(f"v_add_u32 v17, {2*STG}, v16"); a(f"v_add_u32 v18, {4*STG}, v16")
    def qacc(part, hh): return ACC + (part * 2 + hh) * 8
    units = [(part * 128 + hh * 32, qacc(part, hh), part != 2) for part in range(3) for hh in range(2)]
    k1_main(a, units, 416, 3)
    stamp(a, 3)
    a.nop(8); a("s_barrier")
    a(f"v_lshlrev_b32 v3, 3, v2"); a(f"v_add_u32 v3, {WPHI_LDS}, v3"); a("s_lshl_b32 s71, s70, 10"); a("v_add_u32 v3, s71, v3")
    for hh in range(2): a(f"ds_read_b64_tr_b16 {vr(32+hh*2,2)}, v3 offset:{hh*512}")
    a("v_mov_b32 v10, 1.0")
    a("v_lshlrev_b32 v4, 4, v2")
    a("s_lshl_b32 s71, s66, 12"); a("s_lshl_b32 s72, s70, 11"); a("s_add_u32 s71, s71, s72")
    a("s_lshl_b32 s72, s73, 11"); a("s_add_u32 s71, s71, s72")
    a(f"s_add_u32 s71, s71, {PHI_OFF}"); a("v_add_u32 v4, s71, v4"); a("v_add_u32 v5, 0x8000, v4")
    a("s_waitcnt lgkmcnt(0)")
    def blocks(part):
        return [(qacc(part, hh) + b * 4, 32 + hh * 2, 64 + (hh * 2 + b) * 24, 48 + (hh * 2 + b) * 4, 50 + (hh * 2 + b) * 4) for hh in range(2) for b in range(2)]
    phi_multi(a, blocks(0), 10)
    for hh in range(2):
        for b in range(2): a(f"buffer_store_dwordx4 {vr(48+(hh*2+b)*4,4)}, v{4+b}, s[24:27], 0 offen offset:{hh*1024}")
    a("v_and_b32 v6, 15, v2"); a("v_lshrrev_b32 v7, 4, v2"); a("v_lshlrev_b32 v11, 2, v7"); a("v_sub_u32 v6, v6, v11")
    a("v_mov_b32 v12, 0x3f80"); a("v_mov_b32 v13, 0x3f800000"); a("v_mov_b32 v8, 0"); a("v_mov_b32 v9, 0")
    a("v_cmp_eq_u32 vcc, 0, v6"); a.nop(2); a("v_cndmask_b32 v8, v8, v12, vcc")
    a("v_cmp_eq_u32 vcc, 1, v6"); a.nop(2); a("v_cndmask_b32 v8, v8, v13, vcc")
    a("v_cmp_eq_u32 vcc, 2, v6"); a.nop(2); a("v_cndmask_b32 v9, v9, v12, vcc")
    a("v_cmp_eq_u32 vcc, 3, v6"); a.nop(2); a("v_cndmask_b32 v9, v9, v13, vcc")
    for i in range(4): a(f"v_mov_b32 v{12+i}, 0x3f803f80")
    a("v_and_b32 v6, 15, v2"); a("v_lshlrev_b32 v6, 7, v6"); a("v_lshl_add_u32 v6, v7, 5, v6")
    a("s_mul_i32 s71, s69, 8704"); a("s_lshl_b32 s72, s70, 12"); a("s_add_u32 s72, s72, s71"); a("v_add_u32 v6, s72, v6")
    a("s_lshl_b32 s72, s70, 8"); a("s_add_u32 s72, s72, s71"); a("s_add_u32 s72, s72, 8192")
    a("v_lshlrev_b32 v7, 5, v7"); a("v_add_u32 v7, s72, v7")
    phi_multi(a, blocks(1), 10)
    a.nop(1)
    for k in range(4):
        for sg in range(2): a(f"v_mfma_f32_16x16x16_bf16 {vr(64+(k*2+sg)*4,4)}, {vr(48+k*4+sg*2,2)}, v[8:9], 0")
    for hh in range(2):
        for b in range(2):
            va = qacc(2, hh) + b * 4
            a(f"v_cvt_pk_bf16_f32 v{112+hh*4+2*b}, v{va}, v{va+1}"); a(f"v_cvt_pk_bf16_f32 v{113+hh*4+2*b}, v{va+2}, v{va+3}")
    a.nop(1)
    for hh in range(2):
        for b in range(2):
            for sg in range(2):
                t = 64 + ((hh * 2 + b) * 2 + sg) * 4; o = 96 + (hh * 2 + sg) * 4 + 2 * b
                a(f"v_cvt_pk_bf16_f32 v{o}, v{t}, v{t+1}"); a(f"v_cvt_pk_bf16_f32 v{o+1}, v{t+2}, v{t+3}")
    a.nop(2)
    for hh in range(2):
        for sg in range(2):
            a(f"v_mfma_f32_16x16x32_bf16 {vr(120+(hh*2+sg)*4,4)}, {vr(96+(hh*2+sg)*4,4)}, {vr(112+hh*4,4)}, 0")
            a(f"v_mfma_f32_16x16x32_bf16 {vr(136+(hh*2+sg)*4,4)}, {vr(96+(hh*2+sg)*4,4)}, v[12:15], 0")
    a.nop(8)
    for hh in range(2):
        for sg in range(2):
            a(f"ds_write_b128 v6, {vr(120+(hh*2+sg)*4,4)} offset:{hh*2048+sg*16}")
            a(f"ds_write_b128 v7, {vr(136+(hh*2+sg)*4,4)} offset:{hh*128+sg*16}")
    a("s_waitcnt lgkmcnt(0)"); a("s_barrier")
    a("v_lshlrev_b32 v3, 2, v0")
    a("s_lshl_b32 s71, s66, 13"); a(f"s_add_u32 s71, s71, {KV_OFF}"); a("v_add_u32 v4, s71, v3")
    for i in range(4):
        for w in range(4): a(f"ds_read_b32 v{16+i*4+w}, v3 offset:{w*8704+i*2048}")
    for w in range(4): a(f"ds_read_b32 v{32+w}, v3 offset:{w*8704+8192}")
    a("s_waitcnt lgkmcnt(0)")
    for i in range(5):
        a(f"v_add_f32 v{16+i*4}, v{16+i*4}, v{17+i*4}"); a(f"v_add_f32 v{18+i*4}, v{18+i*4}, v{19+i*4}")
    for i in range(5): a(f"v_add_f32 v{16+i*4}, v{16+i*4}, v{18+i*4}")
    a("s_movk_i32 s72, 4096")
    a("buffer_atomic_add_f32 v16, v4, s[24:27], 0 offen"); a("buffer_atomic_add_f32 v20, v4, s[24:27], 0 offen offset:2048")
    a("buffer_atomic_add_f32 v24, v4, s[24:27], s72 offen"); a("buffer_atomic_add_f32 v28, v4, s[24:27], s72 offen offset:2048")
    a("s_cmp_ge_u32 s14, 2"); a("s_cbranch_scc1 k1_end")
    a("s_lshl_b32 s71, s66, 9"); a(f"s_add_u32 s71, s71, {Z_OFF}"); a("v_add_u32 v4, s71, v3")
    a("buffer_atomic_add_f32 v32, v4, s[24:27], 0 offen")
    a("s_branch k1_end")
    a.lab("k1_gu")
    for i in range(4):
        a("s_lshl_b32 s71, s14, 2"); a(f"s_add_u32 s71, s71, {i}")
        a("s_cmp_lt_u32 s71, 22"); a(f"s_cbranch_scc0 k1_ga{i}")
        a("s_cmp_ge_u32 s71, 11")
        for w in range(4): a(f"s_cselect_b32 s{36+4*i+w}, s{32+w}, s{28+w}")
        a("s_cselect_b32 s72, 11, 0"); a(f"s_lshl_b32 s{52+i}, s71, 10"); a("s_sub_u32 s71, s71, s72"); a("s_lshl_b32 s71, s71, 10")
        a(f"s_mov_b32 s{56+i}, {32*2752}")
        a("v_add_u32 v4, s71, v3")
        divmod_lane(a, 5, 6, 4, 352); kmap(a, 7, 5, 8)
        a("v_mul_u32_u24 v7, 2752, v7"); a("v_add_u32 v7, v7, v6")
        a("s_mul_i32 s72, s66, 352"); a(f"v_add_u32 v{20+i}, s72, v7")
        a(f"s_branch k1_gb{i}")
        a.lab(f"k1_ga{i}")
        for w in range(4): a(f"s_mov_b32 s{36+4*i+w}, s{24+w}")
        a("s_sub_u32 s71, s71, 22")
        a(f"s_lshl_b32 s{52+i}, s71, 10"); a(f"s_add_u32 s{52+i}, s{52+i}, {AOFF}"); a(f"s_movk_i32 s{56+i}, 1024")
        a("s_lshl_b32 s72, s68, 3"); a("s_add_u32 s72, s72, s71"); a("s_lshl_b32 s72, s72, 14")
        a("s_cmp_lt_u32 s71, 8"); a("s_cselect_b32 s72, s72, 0x40000000"); a(f"v_add_u32 v{20+i}, s72, v3")
        a(f"s_cselect_b32 s{61 if False else 52+i}, s{52+i}, {SCR_LDS}"); a(f"s_cselect_b32 s{75 if False else 56+i}, s{56+i}, 0")
        a.lab(f"k1_gb{i}")
    a("v_lshrrev_b32 v4, 2, v2"); a("v_mul_u32_u24 v4, 352, v4"); a("v_and_b32 v5, 3, v2"); a("v_lshl_add_u32 v4, v5, 3, v4")
    a("s_mul_i32 s71, s70, 192"); a("v_add_u32 v16, s71, v4"); a(f"v_add_u32 v17, {2*STG}, v16"); a(f"v_add_u32 v18, {4*STG}, v16")
    def gacc(R, p): return ACC + (p * 2 + R) * 8
    def gunits(NP): return [(R * 11264 + p * 32, gacc(R, p), True) for p in range(NP) for R in range(2)]
    a("s_cmp_eq_u32 s70, 1"); a("s_cbranch_scc1 k1_gu1")
    k1_main(a, gunits(6), 352, 4); a("s_branch k1_gu_epi")
    a.lab("k1_gu1"); k1_main(a, gunits(5), 352, 4)
    a.lab("k1_gu_epi"); stamp(a, 3)
    a.nop(8)
    a("v_and_b32 v4, 15, v2"); a("v_lshlrev_b32 v4, 4, v4")
    a("v_lshrrev_b32 v5, 5, v2"); a("v_lshl_add_u32 v4, v5, 8, v4"); a("v_bfe_u32 v5, v2, 4, 1"); a("v_mul_u32_u24 v5, 44032, v5"); a("v_add_u32 v4, v4, v5")
    a("s_mul_i32 s71, s66, 11"); a("s_mul_i32 s72, s70, 6"); a("s_add_u32 s71, s71, s72")
    a("s_lshr_b32 s72, s73, 4"); a("s_mul_i32 s72, s72, 44032"); a("s_lshl_b32 s74, s71, 9"); a("s_add_u32 s72, s72, s74")
    a(f"s_add_u32 s72, s72, {H_OFF}"); a("v_add_u32 v4, s72, v4")
    for p in range(6):
        if p == 5: a("s_cmp_eq_u32 s70, 1"); a("s_cbranch_scc1 k1_end")
        a(f"s_add_u32 s72, s71, {p}"); a("s_cmp_ge_u32 s72, 86"); a("s_cbranch_scc1 k1_end")
        G = [gacc(0, p) + b * 4 for b in range(2)]; U = [gacc(1, p) + b * 4 for b in range(2)]; T = [48 + b * 8 for b in range(2)]
        for b in range(2):
            a(f"v_cvt_pk_bf16_f32 v{T[b]}, v{G[b]}, v{G[b]+1}"); a(f"v_cvt_pk_bf16_f32 v{T[b]+1}, v{G[b]+2}, v{G[b]+3}")
            a(f"v_cvt_pk_bf16_f32 v{T[b]+2}, v{U[b]}, v{U[b]+1}"); a(f"v_cvt_pk_bf16_f32 v{T[b]+3}, v{U[b]+2}, v{U[b]+3}")
        for b in range(2):
            for i in range(2):
                a(f"v_lshlrev_b32 v{G[b]+2*i}, 16, v{T[b]+i}"); a(f"v_and_b32 v{G[b]+2*i+1}, 0xffff0000, v{T[b]+i}")
                a(f"v_lshlrev_b32 v{U[b]+2*i}, 16, v{T[b]+2+i}"); a(f"v_and_b32 v{U[b]+2*i+1}, 0xffff0000, v{T[b]+2+i}")
        for b in range(2):
            for i in (0, 2): a(f"v_pk_mul_f32 {vr(T[b]+i,2)}, {vr(G[b]+i,2)}, s[{SL}:{SL+1}]")
        for b in range(2):
            for i in range(4): a(f"v_exp_f32 v{T[b]+i}, -v{T[b]+i}")
        a.nop(1)
        for b in range(2):
            for i in (0, 2): a(f"v_pk_add_f32 {vr(T[b]+i,2)}, {vr(T[b]+i,2)}, s[{S1}:{S1+1}]")
        for b in range(2):
            for i in range(4): a(f"v_rcp_f32 v{T[b]+i}, v{T[b]+i}")
        a.nop(1)
        for b in range(2):
            for i in (0, 2): a(f"v_pk_mul_f32 {vr(T[b]+i,2)}, {vr(T[b]+i,2)}, {vr(G[b]+i,2)}")
        for b in range(2):
            a(f"v_cvt_pk_bf16_f32 v{T[b]+4}, v{T[b]}, v{T[b]+1}"); a(f"v_cvt_pk_bf16_f32 v{T[b]+5}, v{T[b]+2}, v{T[b]+3}")
        for b in range(2):
            for i in range(2):
                a(f"v_lshlrev_b32 v{T[b]+2*i}, 16, v{T[b]+4+i}"); a(f"v_and_b32 v{T[b]+2*i+1}, 0xffff0000, v{T[b]+4+i}")
        for b in range(2):
            for i in (0, 2): a(f"v_pk_mul_f32 {vr(T[b]+i,2)}, {vr(T[b]+i,2)}, {vr(U[b]+i,2)}")
        for b in range(2):
            a(f"v_cvt_pk_bf16_f32 v{G[0]+2*b}, v{T[b]}, v{T[b]+1}"); a(f"v_cvt_pk_bf16_f32 v{G[0]+2*b+1}, v{T[b]+2}, v{T[b]+3}")
        a.nop(1)
        a(f"v_permlane16_swap_b32 v{G[0]}, v{G[0]+2}"); a(f"v_permlane16_swap_b32 v{G[0]+1}, v{G[0]+3}")
        a(f"buffer_store_dwordx4 {vr(G[0],4)}, v4, s[24:27], 0 offen offset:{p*512}")
    a.lab("k1_end")
    if STAMP:
        a("s_cmp_ge_u32 s2, 256"); a("s_cbranch_scc1 k1_end2")
        stamp(a, 6); a("s_waitcnt vmcnt(0)"); stamp(a, 7); a("s_mov_b64 s[92:93], s[94:95]"); stamp_out(a, 24, 9, 0)
        a.lab("k1_end2")
    a("s_endpgm")

def main():
    a = Asm()
    hdr = open(f"cdna_kernels/{NAME}.s.ref").read().split("; Override launch")[0]
    import gen3
    launches = ["; @launch kernel=k0_kernel grid=(512,1,1) block=(64,1,1) lds=0",
                f"; @launch kernel=k1_kernel grid=(256,1,1) block=(512,1,1) lds={K1_LDS}", gen3.LAUNCH]
    out = hdr + "\n".join(launches) + "\n" + '.amdgcn_target "amdgcn-amd-amdhsa--gfx950"\n.text\n'
    gen_k0(a); gen_k1(a); gen3.gen(a)
    out += "\n".join(a.l) + "\n" + '.section .rodata,"a"\n' + kdesc("k0_kernel", 136) + kdesc("k1_kernel", 256) + gen3.desc()
    dst = sys.argv[1] if len(sys.argv) > 1 else f"cdna_kernels/{NAME}.s"
    open(dst, "w").write(out)
if __name__ == "__main__": main()
```

```python
import sys, re, os
NAME = "recurrent_scan__linear_kernel_hedgehog__glu_gated_swiglu__prompt"
MB = 1 << 20
XN_OFF, H_OFF, PHI_OFF, KV_OFF = 0, 2 * MB, 8 * MB, 12 * MB
Z_OFF = KV_OFF + 65536
WS_SIZE = 16 * MB
LOG2E = 0x3fb8aa3b
STAMP = bool(os.environ.get('STAMP'))
PREFETCH = int(os.environ.get('PREFETCH', '3'))

class Asm:
    def __init__(s): s.l = []
    def __call__(s, t):
        m = re.search(r"offset:(\d+)", t)
        if m and t.startswith("buffer_"): assert int(m.group(1)) <= 4095, t
        if m and t.startswith("ds_"): assert int(m.group(1)) <= 65535, t
        if re.match(r"buffer_store_dwordx[24] ", t): t += " sc1"
        s.l.append("    " + t)
    def lab(s, t): s.l.append(t + ":")
    def nop(s, n):
        while n > 0:
            k = min(n, 16); s(f"s_nop {k-1}"); n -= k
    def srd(s, d, lo, hi, size):
        s(f"s_mov_b32 s{d}, s{lo}"); s(f"s_and_b32 s{d+1}, s{hi}, 0xffff")
        s(f"s_mov_b32 s{d+2}, {size}"); s(f"s_mov_b32 s{d+3}, 0x00020000")
    def head(s, name):
        s.l += [".p2align 8", f".globl {name}", f".type {name},@function"]; s.lab(name)

def stamp(a, i):
    if STAMP: a(f"s_memtime s[{76+2*i}:{77+2*i}]")
def stamp_out(a, srd, n, tag):
    if not STAMP: return
    a(f"s_memrealtime s[{76+2*n}:{77+2*n}]")
    a("s_waitcnt lgkmcnt(0)")
    a("s_lshl_b32 s74, s2, 3"); a("s_add_u32 s74, s74, s14"); a("s_lshl_b32 s74, s74, 7"); a(f"s_add_u32 s74, s74, {14*MB + tag*(1<<19)}")
    a("v_mov_b32 v250, s74")
    for i in range(2 * (n + 1)):
        a(f"v_mov_b32 v251, s{76+i}"); a(f"buffer_store_dword v251, v250, s[{srd}:{srd+3}], 0 offen offset:{4*i}")
def vr(a, n): return f"v[{a}:{a+n-1}]"
def kdesc(name, vgpr, sgpr=100):
    return f""".p2align 6
.amdhsa_kernel {name}
  .amdhsa_next_free_vgpr {vgpr}
  .amdhsa_next_free_sgpr {sgpr}
  .amdhsa_accum_offset {(vgpr+3)//4*4}
  .amdhsa_group_segment_fixed_size 0
  .amdhsa_kernarg_size 88
  .amdhsa_user_sgpr_count 2
  .amdhsa_user_sgpr_kernarg_segment_ptr 1
  .amdhsa_system_sgpr_workgroup_id_x 1
.end_amdhsa_kernel
"""
def rb_pair(a, x0, x1, t):
    a(f"v_cvt_pk_bf16_f32 v{t}, v{x0}, v{x1}")
    a(f"v_lshlrev_b32 v{x0}, 16, v{t}"); a(f"v_and_b32 v{x1}, 0xffff0000, v{t}")

def gen_k0(a):
    a.head("k0_kernel")
    a("s_cmp_ge_u32 s2, 512"); a("s_cbranch_scc1 k0_end")
    a("s_load_dwordx2 s[4:5], s[0:1], 0"); a("s_load_dwordx2 s[6:7], s[0:1], 80")
    a("v_and_b32 v1, 15, v0"); a("v_lshrrev_b32 v2, 4, v0")
    a("s_lshl_b32 s3, s2, 12")
    a("v_lshlrev_b32 v3, 10, v2"); a("v_lshl_add_u32 v3, v1, 4, v3"); a("v_add_u32 v3, s3, v3")
    a("s_waitcnt lgkmcnt(0)")
    a.srd(8, 4, 5, 2 * MB); a.srd(12, 6, 7, WS_SIZE)
    for c in range(4): a(f"buffer_load_dwordx4 {vr(4+4*c,4)}, v3, s[8:11], 0 offen offset:{256*c}")
    npf = 0
    if PREFETCH:
        a("s_load_dwordx2 s[20:21], s[0:1], 8")
        a("s_load_dwordx2 s[22:23], s[0:1], 24")
        a("s_load_dwordx4 s[24:27], s[0:1], 40")
        a("s_load_dwordx2 s[28:29], s[0:1], 56")
        a("s_and_b32 s30, s2, 7"); a("s_lshr_b32 s31, s2, 3")
        a("v_lshrrev_b32 v70, 3, v0"); a("s_lshl_b32 s32, s31, 3"); a("v_add_u32 v70, s32, v70")
        a("v_and_b32 v71, 7, v0")
        a("s_waitcnt lgkmcnt(0)")
        a.srd(36, 20, 21, 512 * 1536 * 2); a.srd(40, 24, 25, 512 * 1376 * 2); a.srd(44, 26, 27, 512 * 1376 * 2)
        a("v_lshrrev_b32 v72, 1, v71"); a("v_cmp_eq_u32 vcc, 3, v72"); a.nop(2); a("v_cndmask_b32 v72, v72, 0, vcc")
        a("v_lshlrev_b32 v72, 10, v72"); a("v_and_b32 v73, 1, v71"); a("v_lshl_add_u32 v72, v73, 6, v72")
        a("v_mul_u32_u24 v73, 3072, v70"); a("v_add_u32 v72, v72, v73")
        a("s_lshl_b32 s33, s30, 7")
        a("buffer_load_dword v128, v72, s[36:39], s33 offen")
        a("v_mul_u32_u24 v72, 48, v71"); a("v_mul_u32_u24 v73, 2752, v70"); a("v_add_u32 v72, v72, v73")
        a("s_mul_i32 s33, s30, 352")
        a("buffer_load_dword v129, v72, s[40:43], s33 offen"); a("buffer_load_dword v130, v72, s[44:47], s33 offen")
        npf = 3
        if PREFETCH == 2:
            a.srd(36, 28, 29, 1376 * 1024); a.srd(40, 22, 23, 512 * 1024)
            a("v_lshlrev_b32 v72, 7, v0"); a("s_mul_i32 s44, s31, 24576")
            for i in range(3):
                a(f"s_add_u32 s45, s44, {i*8192}"); a(f"buffer_load_dword v{132+i}, v72, s[36:39], s45 offen")
            a("s_lshl_b32 s44, s31, 13"); a("buffer_load_dword v135, v72, s[40:43], s44 offen")
            npf = 7
    a("s_cmp_ge_u32 s2, 68"); a("s_cbranch_scc1 k0_nz")
    for i in range(4): a(f"v_mov_b32 v{20+i}, 0")
    a("s_lshl_b32 s16, s2, 10"); a(f"s_add_u32 s16, s16, {KV_OFF}")
    a("v_lshlrev_b32 v24, 4, v0"); a("v_add_u32 v24, s16, v24")
    a("buffer_store_dwordx4 v[20:23], v24, s[12:15], 0 offen")
    a.lab("k0_nz")
    a(f"s_waitcnt vmcnt({npf})")
    for i in range(16):
        a(f"v_lshlrev_b32 v{32+2*i}, 16, v{4+i}"); a(f"v_and_b32 v{33+2*i}, 0xffff0000, v{4+i}")
    for i in range(16): a(f"v_add_f32 v{64+i}, v{32+2*i}, v{33+2*i}")
    n = 16
    while n > 1:
        for i in range(n // 2): a(f"v_add_f32 v{64+i}, v{64+i}, v{64+i+n//2}")
        n //= 2
    def red16(r):
        for sh in (8, 4, 2, 1):
            a.nop(2); a(f"v_add_f32_dpp v{r}, v{r}, v{r} row_ror:{sh} row_mask:0xf bank_mask:0xf")
    red16(64)
    a("v_mul_f32 v64, 0x3b000000, v64")
    a("v_cvt_pk_bf16_f32 v65, v64, v64"); a("v_lshlrev_b32 v65, 16, v65")
    for i in range(32): a(f"v_sub_f32 v{80+i}, v{32+i}, v64")
    for i in range(16): a(f"v_mul_f32 v{112+i}, v{80+2*i}, v{80+2*i}")
    for i in range(16): a(f"v_fmac_f32 v{112+i}, v{81+2*i}, v{81+2*i}")
    n = 16
    while n > 1:
        for i in range(n // 2): a(f"v_add_f32 v{112+i}, v{112+i}, v{112+i+n//2}")
        n //= 2
    red16(112)
    a("v_mul_f32 v66, 0x3b000000, v112")
    a("v_cvt_pk_bf16_f32 v66, v66, v66"); a("v_lshlrev_b32 v66, 16, v66")
    a("v_add_f32 v66, 0x3727c5ac, v66")
    a("v_cvt_pk_bf16_f32 v66, v66, v66"); a("v_lshlrev_b32 v66, 16, v66")
    a("v_sqrt_f32 v66, v66"); a.nop(1)
    a("v_cvt_pk_bf16_f32 v66, v66, v66"); a("v_lshlrev_b32 v66, 16, v66")
    a("v_rcp_f32 v66, v66"); a.nop(1)
    for i in range(32): a(f"v_sub_f32 v{80+i}, v{32+i}, v65")
    for i in range(16): a(f"v_cvt_pk_bf16_f32 v{112+i}, v{80+2*i}, v{81+2*i}")
    for i in range(16):
        a(f"v_lshlrev_b32 v{80+2*i}, 16, v{112+i}"); a(f"v_and_b32 v{81+2*i}, 0xffff0000, v{112+i}")
    for i in range(32): a(f"v_mul_f32 v{80+i}, v{80+i}, v66")
    for i in range(16): a(f"v_cvt_pk_bf16_f32 v{4+i}, v{80+2*i}, v{81+2*i}")
    a("s_lshr_b32 s16, s2, 2"); a("s_lshl_b32 s16, s16, 14"); a("s_and_b32 s17, s2, 3"); a("s_lshl_b32 s17, s17, 6"); a("s_add_u32 s16, s16, s17")
    a("v_lshrrev_b32 v20, 2, v1"); a("v_lshlrev_b32 v20, 10, v20"); a("v_and_b32 v21, 3, v1"); a("v_lshl_add_u32 v20, v21, 8, v20")
    a("v_lshl_add_u32 v20, v2, 4, v20"); a("v_add_u32 v20, s16, v20")
    for c in range(4):
        a(f"s_movk_i32 s17, {4096*c}")
        a(f"buffer_store_dwordx4 {vr(4+4*c,4)}, v20, s[12:15], s17 offen")
    a.lab("k0_end"); a("s_endpgm")

AOFF = 22528
STG = AOFF + 8192 + 1024
NSLOT = 5
WPHI_LDS = STG * NSLOT
K1_LDS = WPHI_LDS + 2048
SCR_LDS = AOFF + 8192
NST = 16
BR = 32
AR = 48
ACC = 160
SL, S1 = 62, 64

class LQ:
    def __init__(s, a): s.a = a; s.q = []
    def issue(s, tag, text): s.a(text); s.q.append(tag)
    def need(s, tags):
        idx = max((i for i, t in enumerate(s.q) if t in tags), default=-1)
        if idx < 0: return
        k = len(s.q) - 1 - idx
        s.a(f"s_waitcnt lgkmcnt({min(k,15)})")
        s.q = s.q[idx + 1:] if k <= 15 else s.q[len(s.q) - 15:]

def k1_dma(a, stage, nd):
    sl = stage % NSLOT
    for i in range(nd):
        a(f"s_add_u32 m0, s{52+i}, {sl*STG}")
        a(f"s_mul_i32 s60, s{56+i}, {stage}")
        a(f"buffer_load_dwordx4 v{20+i}, s[{36+4*i}:{39+4*i}], s60 offen lds")

def k1_main(a, units, RS, nd):
    lq = LQ(a)
    n = len(units)
    seq = [(st, i) for st in range(NST) for i in range(n)]
    def rd(k):
        st, i = seq[k]
        sl = st % NSLOT
        if i == 0:
            for b in range(2):
                lq.issue(('A', st, b), f"ds_read_b128 {vr(AR+((st&1)*2+b)*4,4)}, v{27+sl//2} offset:{(sl%2)*STG+b*1024}")
        off = units[i][0]; br = BR + (k % 4) * 4
        base = 16 + sl // 2; o2 = (sl % 2) * STG
        lq.issue(('B', k), f"ds_read_b64_tr_b16 {vr(br,2)}, v{base} offset:{o2+off}")
        lq.issue(('B', k), f"ds_read_b64_tr_b16 {vr(br+2,2)}, v{base} offset:{o2+off+16*RS}")
    for st in range(4): k1_dma(a, st, nd)
    stamp(a, 5)
    a(f"s_waitcnt vmcnt({2*nd})"); a("s_barrier")
    stamp(a, 1)
    for k in range(3): rd(k)
    for k, (st, i) in enumerate(seq):
        if i == 0:
            if st > 0:
                rem = max(0, min(st + 3, NST - 1) - (st + 1))
                a(f"s_waitcnt vmcnt({rem*nd})"); a("s_barrier")
            if st == 8: stamp(a, 2)
            if st + 4 < NST: k1_dma(a, st + 4, nd)
        if k + 3 < len(seq): rd(k + 3)
        lq.need({('B', k), ('A', st, 0), ('A', st, 1)})
        off, ac, tr = units[i]; br = BR + (k % 4) * 4
        for b in range(2):
            ar = AR + ((st & 1) * 2 + b) * 4; d = ac + b * 4
            c = "0" if st == 0 else vr(d, 4)
            if tr: a(f"v_mfma_f32_16x16x32_bf16 {vr(d,4)}, {vr(br,4)}, {vr(ar,4)}, {c}")
            else: a(f"v_mfma_f32_16x16x32_bf16 {vr(d,4)}, {vr(ar,4)}, {vr(br,4)}, {c}")

def phi_multi(a, blocks, ones):
    n = len(blocks)
    B = [dict(ac=ac, wp=wp, t0=T, p=T+2, e=T+6, f=T+10, mx=T+14, nm=T+15, c=T+16, d=T+17, s=T+18, op=op, om=om) for ac, wp, T, op, om in blocks]
    def each(fn):
        for b in B: fn(b)
    each(lambda b: (a(f"v_cvt_pk_bf16_f32 v{b['t0']}, v{b['ac']}, v{b['ac']+1}"), a(f"v_cvt_pk_bf16_f32 v{b['t0']+1}, v{b['ac']+2}, v{b['ac']+3}")))
    a.nop(1)
    each(lambda b: a(f"v_mfma_f32_16x16x16_bf16 {vr(b['p'],4)}, {vr(b['wp'],2)}, {vr(b['t0'],2)}, 0"))
    a.nop(8)
    each(lambda b: (a(f"v_cvt_pk_bf16_f32 v{b['t0']}, v{b['p']}, v{b['p']+1}"), a(f"v_cvt_pk_bf16_f32 v{b['t0']+1}, v{b['p']+2}, v{b['p']+3}")))
    each(lambda b: (a(f"v_lshlrev_b32 v{b['p']}, 16, v{b['t0']}"), a(f"v_and_b32 v{b['p']+1}, 0xffff0000, v{b['t0']}"),
                    a(f"v_lshlrev_b32 v{b['p']+2}, 16, v{b['t0']+1}"), a(f"v_and_b32 v{b['p']+3}, 0xffff0000, v{b['t0']+1}")))
    each(lambda b: (a(f"v_max3_f32 v{b['mx']}, v{b['p']}, v{b['p']+1}, v{b['p']+2}"), a(f"v_max3_f32 v{b['nm']}, -v{b['p']}, -v{b['p']+1}, -v{b['p']+2}")))
    each(lambda b: (a(f"v_max_f32 v{b['mx']}, v{b['mx']}, v{b['p']+3}"), a(f"v_max_f32_e64 v{b['nm']}, v{b['nm']}, -v{b['p']+3}")))
    pad = max(0, 2 - (n - 1))
    a.nop(1 if n > 1 else 2)
    each(lambda b: a(f"v_permlane32_swap_b32 v{b['mx']}, v{b['nm']}"))
    each(lambda b: a(f"v_max_f32 v{b['c']}, v{b['mx']}, v{b['nm']}"))
    each(lambda b: a(f"v_mov_b32 v{b['d']}, v{b['c']}"))
    a.nop(pad)
    each(lambda b: a(f"v_permlane16_swap_b32 v{b['c']}, v{b['d']}"))
    each(lambda b: a(f"v_max_f32 v{b['mx']}, v{b['c']}, v{b['d']}"))
    each(lambda b: a(f"v_mov_b32 v{b['nm']}, v{b['mx']}"))
    a.nop(pad)
    each(lambda b: a(f"v_permlane32_swap_b32 v{b['mx']}, v{b['nm']}"))
    each(lambda b: a(f"v_pk_mul_f32 {vr(b['mx'],2)}, {vr(b['mx'],2)}, s[{SL}:{SL+1}]"))
    for i in (0, 2):
        each(lambda b: a(f"v_pk_fma_f32 {vr(b['e']+i,2)}, {vr(b['p']+i,2)}, s[{SL}:{SL+1}], {vr(b['mx'],2)} op_sel_hi:[1,1,0] neg_lo:[0,0,1] neg_hi:[0,0,1]"))
        each(lambda b: a(f"v_pk_fma_f32 {vr(b['f']+i,2)}, {vr(b['p']+i,2)}, s[{SL}:{SL+1}], {vr(b['mx'],2)} op_sel:[0,0,1] op_sel_hi:[1,1,1] neg_lo:[1,0,1] neg_hi:[1,0,1]"))
    for i in range(4):
        each(lambda b: (a(f"v_exp_f32 v{b['e']+i}, v{b['e']+i}"), a(f"v_exp_f32 v{b['f']+i}, v{b['f']+i}")))
    a.nop(1)
    each(lambda b: (a(f"v_pk_add_f32 {vr(b['mx'],2)}, {vr(b['e'],2)}, {vr(b['e']+2,2)}"), a(f"v_pk_add_f32 {vr(b['c'],2)}, {vr(b['f'],2)}, {vr(b['f']+2,2)}")))
    each(lambda b: (a(f"v_add_f32 v{b['mx']}, v{b['mx']}, v{b['nm']}"), a(f"v_add_f32 v{b['c']}, v{b['c']}, v{b['d']}")))
    a.nop(1)
    each(lambda b: (a(f"v_mfma_f32_16x16x4_f32 {vr(b['p'],4)}, v{ones}, v{b['mx']}, 0"), a(f"v_mfma_f32_16x16x4_f32 {vr(b['s'],4)}, v{ones}, v{b['c']}, 0")))
    a.nop(10)
    each(lambda b: (a(f"v_rcp_f32 v{b['mx']}, v{b['p']}"), a(f"v_rcp_f32 v{b['c']}, v{b['s']}")))
    a.nop(1)
    for i in (0, 2):
        each(lambda b: (a(f"v_pk_mul_f32 {vr(b['e']+i,2)}, {vr(b['e']+i,2)}, {vr(b['mx'],2)} op_sel_hi:[1,0]"),
                        a(f"v_pk_mul_f32 {vr(b['f']+i,2)}, {vr(b['f']+i,2)}, {vr(b['c'],2)} op_sel_hi:[1,0]")))
    each(lambda b: (a(f"v_cvt_pk_bf16_f32 v{b['op']}, v{b['e']}, v{b['e']+1}"), a(f"v_cvt_pk_bf16_f32 v{b['op']+1}, v{b['e']+2}, v{b['e']+3}"),
                    a(f"v_cvt_pk_bf16_f32 v{b['om']}, v{b['f']}, v{b['f']+1}"), a(f"v_cvt_pk_bf16_f32 v{b['om']+1}, v{b['f']+2}, v{b['f']+3}")))

def divmod_lane(a, dst_q, dst_r, src, d):
    magic = (1 << 24) // d + 1
    for o in range(0, 14336, 16): assert (o * magic) >> 24 == o // d, (d, o)
    a(f"v_mul_u32_u24 v{dst_q}, {magic}, v{src}"); a(f"v_lshrrev_b32 v{dst_q}, 24, v{dst_q}")
    a(f"v_mul_u32_u24 v{dst_r}, {d}, v{dst_q}"); a(f"v_sub_u32 v{dst_r}, v{src}, v{dst_r}")

def kmap(a, dst, sr, t):
    a(f"v_bfe_u32 v{dst}, v{sr}, 2, 2"); a(f"v_lshlrev_b32 v{dst}, 3, v{dst}")
    a(f"v_lshrrev_b32 v{t}, 4, v{sr}"); a(f"v_lshl_add_u32 v{dst}, v{t}, 2, v{dst}")
    a(f"v_and_b32 v{t}, 3, v{sr}"); a(f"v_add_u32 v{dst}, v{dst}, v{t}")

def k3pf(a, reg, tag):
    if PREFETCH < 3: return
    a("s_cmp_ge_u32 s14, 6"); a(f"s_cbranch_scc1 k1_pfo{tag}")
    a.srd(36, 98, 99, 1376 * 1024); a("s_mul_i32 s71, s15, 6"); a("s_add_u32 s71, s71, s14")
    a(f"s_branch k1_pfd{tag}")
    a.lab(f"k1_pfo{tag}")
    a.srd(36, 96, 97, 512 * 1024); a("s_lshl_b32 s71, s15, 1"); a("s_add_u32 s71, s71, s14"); a("s_sub_u32 s71, s71, 6")
    a.lab(f"k1_pfd{tag}")
    a("s_lshl_b32 s71, s71, 13"); a(f"v_lshlrev_b32 v{reg}, 7, v2")
    a(f"buffer_load_dword v{reg+1}, v{reg}, s[36:39], s71 offen")

def gen_k1(a):
    a.head("k1_kernel")
    a("s_cmp_ge_u32 s2, 256"); a("s_cbranch_scc1 k1_end")
    stamp(a, 0)
    if STAMP: a("s_memrealtime s[94:95]")
    a("s_load_dwordx4 s[4:7], s[0:1], 8")
    a("s_load_dwordx4 s[8:11], s[0:1], 40")
    a("s_load_dwordx2 s[12:13], s[0:1], 80")
    a("s_load_dwordx2 s[96:97], s[0:1], 24")
    a("s_load_dwordx2 s[98:99], s[0:1], 56")
    a("v_lshrrev_b32 v1, 6, v0"); a("v_and_b32 v2, 63, v0"); a.nop(1)
    a("v_readfirstlane_b32 s14, v1")
    a("s_and_b32 s66, s2, 7"); a("s_lshr_b32 s15, s2, 3")
    a("s_and_b32 s67, s15, 1")
    a("s_lshr_b32 s68, s15, 1")
    a("s_and_b32 s69, s14, 3")
    a("s_lshr_b32 s70, s14, 2")
    a(f"s_mov_b32 s{SL}, {LOG2E:#x}"); a(f"s_mov_b32 s{SL+1}, {LOG2E:#x}"); a(f"s_mov_b32 s{S1}, 1.0"); a(f"s_mov_b32 s{S1+1}, 1.0")
    a("s_lshl_b32 s71, s68, 7"); a("s_lshl_b32 s72, s69, 5"); a("s_add_u32 s73, s71, s72")
    a("v_lshlrev_b32 v3, 4, v2")
    a("s_waitcnt lgkmcnt(0)")
    stamp(a, 4)
    a.srd(24, 12, 13, WS_SIZE)
    a.srd(16, 4, 5, 512 * 1536 * 2)
    a.srd(28, 8, 9, 512 * 1376 * 2); a.srd(32, 10, 11, 512 * 1376 * 2)
    a("s_lshl_b32 s71, s69, 11"); a(f"s_add_u32 s71, s71, {AOFF}"); a("v_add_u32 v27, s71, v3")
    a(f"v_add_u32 v28, {2*STG}, v27"); a(f"v_add_u32 v29, {4*STG}, v27")
    a("s_cmp_eq_u32 s67, 1"); a("s_cbranch_scc1 k1_gu")
    a.srd(20, 6, 7, 16384)
    a("s_cmp_ge_u32 s14, 2"); a("s_cbranch_scc1 k1_q_nophi")
    a("s_lshl_b32 s71, s66, 11"); a("s_lshl_b32 s72, s14, 10"); a("s_add_u32 s71, s71, s72")
    a(f"s_add_u32 m0, s72, {WPHI_LDS}"); a.nop(1)
    a("buffer_load_dwordx4 v3, s[20:23], s71 offen lds")
    a.lab("k1_q_nophi")
    for i in range(3):
        a("s_mul_i32 s71, s14, 3"); a(f"s_add_u32 s71, s71, {i}")
        a("s_cmp_lt_u32 s71, 13"); a(f"s_cbranch_scc0 k1_qa{i}")
        for w in range(4): a(f"s_mov_b32 s{36+4*i+w}, s{16+w}")
        a(f"s_lshl_b32 s{52+i}, s71, 10"); a(f"s_mov_b32 s{56+i}, {32*3072}")
        a(f"v_add_u32 v4, s{52+i}, v3")
        divmod_lane(a, 5, 6, 4, 416); kmap(a, 7, 5, 8)
        a("v_mul_u32_u24 v7, 3072, v7")
        a("v_lshrrev_b32 v8, 7, v6"); a("v_cmp_eq_u32 vcc, 3, v8"); a.nop(2); a("v_cndmask_b32 v8, v8, 0, vcc")
        a("v_lshl_add_u32 v7, v8, 10, v7"); a("v_and_b32 v6, 127, v6"); a("v_add_u32 v7, v7, v6")
        a("s_lshl_b32 s72, s66, 7"); a(f"v_add_u32 v{20+i}, s72, v7")
        a(f"s_branch k1_qb{i}")
        a.lab(f"k1_qa{i}")
        for w in range(4): a(f"s_mov_b32 s{36+4*i+w}, s{24+w}")
        a("s_sub_u32 s71, s71, 13")
        a(f"s_lshl_b32 s{52+i}, s71, 10"); a(f"s_add_u32 s{52+i}, s{52+i}, {AOFF}"); a(f"s_movk_i32 s{56+i}, 1024")
        a("s_lshl_b32 s72, s68, 3"); a("s_add_u32 s72, s72, s71"); a("s_lshl_b32 s72, s72, 14")
        a("s_cmp_lt_u32 s71, 8"); a("s_cselect_b32 s72, s72, 0x40000000"); a(f"v_add_u32 v{20+i}, s72, v3")
        a(f"s_cselect_b32 s{61 if False else 52+i}, s{52+i}, {SCR_LDS}"); a(f"s_cselect_b32 s{75 if False else 56+i}, s{56+i}, 0")
        a.lab(f"k1_qb{i}")
    a("v_lshrrev_b32 v4, 2, v2"); a("v_mul_u32_u24 v4, 416, v4"); a("v_and_b32 v5, 3, v2"); a("v_lshl_add_u32 v4, v5, 3, v4")
    a("s_lshl_b32 s71, s70, 6"); a("v_add_u32 v16, s71, v4"); a(f"v_add_u32 v17, {2*STG}, v16"); a(f"v_add_u32 v18, {4*STG}, v16")
    def qacc(part, hh): return ACC + (part * 2 + hh) * 8
    units = [(part * 128 + hh * 32, qacc(part, hh), part != 2) for part in range(3) for hh in range(2)]
    k1_main(a, units, 416, 3)
    stamp(a, 3)
    k3pf(a, 208, "q")
    a.nop(8); a("s_barrier")
    a(f"v_lshlrev_b32 v3, 3, v2"); a(f"v_add_u32 v3, {WPHI_LDS}, v3"); a("s_lshl_b32 s71, s70, 10"); a("v_add_u32 v3, s71, v3")
    for hh in range(2): a(f"ds_read_b64_tr_b16 {vr(32+hh*2,2)}, v3 offset:{hh*512}")
    a("v_mov_b32 v10, 1.0")
    a("v_lshlrev_b32 v4, 4, v2")
    a("s_lshl_b32 s71, s66, 12"); a("s_lshl_b32 s72, s70, 11"); a("s_add_u32 s71, s71, s72")
    a("s_lshl_b32 s72, s73, 11"); a("s_add_u32 s71, s71, s72")
    a(f"s_add_u32 s71, s71, {PHI_OFF}"); a("v_add_u32 v4, s71, v4"); a("v_add_u32 v5, 0x8000, v4")
    a("s_waitcnt lgkmcnt(0)")
    def blocks(part):
        return [(qacc(part, hh) + b * 4, 32 + hh * 2, 64 + (hh * 2 + b) * 24, 48 + (hh * 2 + b) * 4, 50 + (hh * 2 + b) * 4) for hh in range(2) for b in range(2)]
    phi_multi(a, blocks(0), 10)
    for hh in range(2):
        for b in range(2): a(f"buffer_store_dwordx4 {vr(48+(hh*2+b)*4,4)}, v{4+b}, s[24:27], 0 offen offset:{hh*1024}")
    a("v_and_b32 v6, 15, v2"); a("v_lshrrev_b32 v7, 4, v2"); a("v_lshlrev_b32 v11, 2, v7"); a("v_sub_u32 v6, v6, v11")
    a("v_mov_b32 v12, 0x3f80"); a("v_mov_b32 v13, 0x3f800000"); a("v_mov_b32 v8, 0"); a("v_mov_b32 v9, 0")
    a("v_cmp_eq_u32 vcc, 0, v6"); a.nop(2); a("v_cndmask_b32 v8, v8, v12, vcc")
    a("v_cmp_eq_u32 vcc, 1, v6"); a.nop(2); a("v_cndmask_b32 v8, v8, v13, vcc")
    a("v_cmp_eq_u32 vcc, 2, v6"); a.nop(2); a("v_cndmask_b32 v9, v9, v12, vcc")
    a("v_cmp_eq_u32 vcc, 3, v6"); a.nop(2); a("v_cndmask_b32 v9, v9, v13, vcc")
    for i in range(4): a(f"v_mov_b32 v{12+i}, 0x3f803f80")
    a("v_and_b32 v6, 15, v2"); a("v_lshlrev_b32 v6, 7, v6"); a("v_lshl_add_u32 v6, v7, 5, v6")
    a("s_mul_i32 s71, s69, 8704"); a("s_lshl_b32 s72, s70, 12"); a("s_add_u32 s72, s72, s71"); a("v_add_u32 v6, s72, v6")
    a("s_lshl_b32 s72, s70, 8"); a("s_add_u32 s72, s72, s71"); a("s_add_u32 s72, s72, 8192")
    a("v_lshlrev_b32 v7, 5, v7"); a("v_add_u32 v7, s72, v7")
    phi_multi(a, blocks(1), 10)
    a.nop(1)
    for k in range(4):
        for sg in range(2): a(f"v_mfma_f32_16x16x16_bf16 {vr(64+(k*2+sg)*4,4)}, {vr(48+k*4+sg*2,2)}, v[8:9], 0")
    for hh in range(2):
        for b in range(2):
            va = qacc(2, hh) + b * 4
            a(f"v_cvt_pk_bf16_f32 v{112+hh*4+2*b}, v{va}, v{va+1}"); a(f"v_cvt_pk_bf16_f32 v{113+hh*4+2*b}, v{va+2}, v{va+3}")
    a.nop(1)
    for hh in range(2):
        for b in range(2):
            for sg in range(2):
                t = 64 + ((hh * 2 + b) * 2 + sg) * 4; o = 96 + (hh * 2 + sg) * 4 + 2 * b
                a(f"v_cvt_pk_bf16_f32 v{o}, v{t}, v{t+1}"); a(f"v_cvt_pk_bf16_f32 v{o+1}, v{t+2}, v{t+3}")
    a.nop(2)
    for hh in range(2):
        for sg in range(2):
            a(f"v_mfma_f32_16x16x32_bf16 {vr(120+(hh*2+sg)*4,4)}, {vr(96+(hh*2+sg)*4,4)}, {vr(112+hh*4,4)}, 0")
            a(f"v_mfma_f32_16x16x32_bf16 {vr(136+(hh*2+sg)*4,4)}, {vr(96+(hh*2+sg)*4,4)}, v[12:15], 0")
    a.nop(8)
    for hh in range(2):
        for sg in range(2):
            a(f"ds_write_b128 v6, {vr(120+(hh*2+sg)*4,4)} offset:{hh*2048+sg*16}")
            a(f"ds_write_b128 v7, {vr(136+(hh*2+sg)*4,4)} offset:{hh*128+sg*16}")
    a("s_waitcnt lgkmcnt(0)"); a("s_barrier")
    a("v_lshlrev_b32 v3, 2, v0")
    a("s_lshl_b32 s71, s66, 13"); a(f"s_add_u32 s71, s71, {KV_OFF}"); a("v_add_u32 v4, s71, v3")
    for i in range(4):
        for w in range(4): a(f"ds_read_b32 v{16+i*4+w}, v3 offset:{w*8704+i*2048}")
    for w in range(4): a(f"ds_read_b32 v{32+w}, v3 offset:{w*8704+8192}")
    a("s_waitcnt lgkmcnt(0)")
    for i in range(5):
        a(f"v_add_f32 v{16+i*4}, v{16+i*4}, v{17+i*4}"); a(f"v_add_f32 v{18+i*4}, v{18+i*4}, v{19+i*4}")
    for i in range(5): a(f"v_add_f32 v{16+i*4}, v{16+i*4}, v{18+i*4}")
    a("s_movk_i32 s72, 4096")
    a("buffer_atomic_add_f32 v16, v4, s[24:27], 0 offen"); a("buffer_atomic_add_f32 v20, v4, s[24:27], 0 offen offset:2048")
    a("buffer_atomic_add_f32 v24, v4, s[24:27], s72 offen"); a("buffer_atomic_add_f32 v28, v4, s[24:27], s72 offen offset:2048")
    a("s_cmp_ge_u32 s14, 2"); a("s_cbranch_scc1 k1_end")
    a("s_lshl_b32 s71, s66, 9"); a(f"s_add_u32 s71, s71, {Z_OFF}"); a("v_add_u32 v4, s71, v3")
    a("buffer_atomic_add_f32 v32, v4, s[24:27], 0 offen")
    a("s_branch k1_end")
    a.lab("k1_gu")
    for i in range(4):
        a("s_lshl_b32 s71, s14, 2"); a(f"s_add_u32 s71, s71, {i}")
        a("s_cmp_lt_u32 s71, 22"); a(f"s_cbranch_scc0 k1_ga{i}")
        a("s_cmp_ge_u32 s71, 11")
        for w in range(4): a(f"s_cselect_b32 s{36+4*i+w}, s{32+w}, s{28+w}")
        a("s_cselect_b32 s72, 11, 0"); a(f"s_lshl_b32 s{52+i}, s71, 10"); a("s_sub_u32 s71, s71, s72"); a("s_lshl_b32 s71, s71, 10")
        a(f"s_mov_b32 s{56+i}, {32*2752}")
        a("v_add_u32 v4, s71, v3")
        divmod_lane(a, 5, 6, 4, 352); kmap(a, 7, 5, 8)
        a("v_mul_u32_u24 v7, 2752, v7"); a("v_add_u32 v7, v7, v6")
        a("s_mul_i32 s72, s66, 352"); a(f"v_add_u32 v{20+i}, s72, v7")
        a(f"s_branch k1_gb{i}")
        a.lab(f"k1_ga{i}")
        for w in range(4): a(f"s_mov_b32 s{36+4*i+w}, s{24+w}")
        a("s_sub_u32 s71, s71, 22")
        a(f"s_lshl_b32 s{52+i}, s71, 10"); a(f"s_add_u32 s{52+i}, s{52+i}, {AOFF}"); a(f"s_movk_i32 s{56+i}, 1024")
        a("s_lshl_b32 s72, s68, 3"); a("s_add_u32 s72, s72, s71"); a("s_lshl_b32 s72, s72, 14")
        a("s_cmp_lt_u32 s71, 8"); a("s_cselect_b32 s72, s72, 0x40000000"); a(f"v_add_u32 v{20+i}, s72, v3")
        a(f"s_cselect_b32 s{61 if False else 52+i}, s{52+i}, {SCR_LDS}"); a(f"s_cselect_b32 s{75 if False else 56+i}, s{56+i}, 0")
        a.lab(f"k1_gb{i}")
    a("v_lshrrev_b32 v4, 2, v2"); a("v_mul_u32_u24 v4, 352, v4"); a("v_and_b32 v5, 3, v2"); a("v_lshl_add_u32 v4, v5, 3, v4")
    a("s_mul_i32 s71, s70, 192"); a("v_add_u32 v16, s71, v4"); a(f"v_add_u32 v17, {2*STG}, v16"); a(f"v_add_u32 v18, {4*STG}, v16")
    def gacc(R, p): return ACC + (p * 2 + R) * 8
    def gunits(NP): return [(R * 11264 + p * 32, gacc(R, p), True) for p in range(NP) for R in range(2)]
    a("s_cmp_eq_u32 s70, 1"); a("s_cbranch_scc1 k1_gu1")
    k1_main(a, gunits(6), 352, 4); a("s_branch k1_gu_epi")
    a.lab("k1_gu1"); k1_main(a, gunits(5), 352, 4)
    a.lab("k1_gu_epi"); stamp(a, 3)
    k3pf(a, 64, "g")
    a.nop(8)
    a("v_and_b32 v4, 15, v2"); a("v_lshlrev_b32 v4, 4, v4")
    a("v_lshrrev_b32 v5, 5, v2"); a("v_lshl_add_u32 v4, v5, 8, v4"); a("v_bfe_u32 v5, v2, 4, 1"); a("v_mul_u32_u24 v5, 44032, v5"); a("v_add_u32 v4, v4, v5")
    a("s_mul_i32 s71, s66, 11"); a("s_mul_i32 s72, s70, 6"); a("s_add_u32 s71, s71, s72")
    a("s_lshr_b32 s72, s73, 4"); a("s_mul_i32 s72, s72, 44032"); a("s_lshl_b32 s74, s71, 9"); a("s_add_u32 s72, s72, s74")
    a(f"s_add_u32 s72, s72, {H_OFF}"); a("v_add_u32 v4, s72, v4")
    for p in range(6):
        if p == 5: a("s_cmp_eq_u32 s70, 1"); a("s_cbranch_scc1 k1_end")
        a(f"s_add_u32 s72, s71, {p}"); a("s_cmp_ge_u32 s72, 86"); a("s_cbranch_scc1 k1_end")
        G = [gacc(0, p) + b * 4 for b in range(2)]; U = [gacc(1, p) + b * 4 for b in range(2)]; T = [48 + b * 8 for b in range(2)]
        for b in range(2):
            a(f"v_cvt_pk_bf16_f32 v{T[b]}, v{G[b]}, v{G[b]+1}"); a(f"v_cvt_pk_bf16_f32 v{T[b]+1}, v{G[b]+2}, v{G[b]+3}")
            a(f"v_cvt_pk_bf16_f32 v{T[b]+2}, v{U[b]}, v{U[b]+1}"); a(f"v_cvt_pk_bf16_f32 v{T[b]+3}, v{U[b]+2}, v{U[b]+3}")
        for b in range(2):
            for i in range(2):
                a(f"v_lshlrev_b32 v{G[b]+2*i}, 16, v{T[b]+i}"); a(f"v_and_b32 v{G[b]+2*i+1}, 0xffff0000, v{T[b]+i}")
                a(f"v_lshlrev_b32 v{U[b]+2*i}, 16, v{T[b]+2+i}"); a(f"v_and_b32 v{U[b]+2*i+1}, 0xffff0000, v{T[b]+2+i}")
        for b in range(2):
            for i in (0, 2): a(f"v_pk_mul_f32 {vr(T[b]+i,2)}, {vr(G[b]+i,2)}, s[{SL}:{SL+1}]")
        for b in range(2):
            for i in range(4): a(f"v_exp_f32 v{T[b]+i}, -v{T[b]+i}")
        a.nop(1)
        for b in range(2):
            for i in (0, 2): a(f"v_pk_add_f32 {vr(T[b]+i,2)}, {vr(T[b]+i,2)}, s[{S1}:{S1+1}]")
        for b in range(2):
            for i in range(4): a(f"v_rcp_f32 v{T[b]+i}, v{T[b]+i}")
        a.nop(1)
        for b in range(2):
            for i in (0, 2): a(f"v_pk_mul_f32 {vr(T[b]+i,2)}, {vr(T[b]+i,2)}, {vr(G[b]+i,2)}")
        for b in range(2):
            a(f"v_cvt_pk_bf16_f32 v{T[b]+4}, v{T[b]}, v{T[b]+1}"); a(f"v_cvt_pk_bf16_f32 v{T[b]+5}, v{T[b]+2}, v{T[b]+3}")
        for b in range(2):
            for i in range(2):
                a(f"v_lshlrev_b32 v{T[b]+2*i}, 16, v{T[b]+4+i}"); a(f"v_and_b32 v{T[b]+2*i+1}, 0xffff0000, v{T[b]+4+i}")
        for b in range(2):
            for i in (0, 2): a(f"v_pk_mul_f32 {vr(T[b]+i,2)}, {vr(T[b]+i,2)}, {vr(U[b]+i,2)}")
        for b in range(2):
            a(f"v_cvt_pk_bf16_f32 v{G[0]+2*b}, v{T[b]}, v{T[b]+1}"); a(f"v_cvt_pk_bf16_f32 v{G[0]+2*b+1}, v{T[b]+2}, v{T[b]+3}")
        a.nop(1)
        a(f"v_permlane16_swap_b32 v{G[0]}, v{G[0]+2}"); a(f"v_permlane16_swap_b32 v{G[0]+1}, v{G[0]+3}")
        a(f"buffer_store_dwordx4 {vr(G[0],4)}, v4, s[24:27], 0 offen offset:{p*512}")
    a.lab("k1_end")
    if STAMP:
        a("s_cmp_ge_u32 s2, 256"); a("s_cbranch_scc1 k1_end2")
        stamp(a, 6); a("s_waitcnt vmcnt(0)"); stamp(a, 7); a("s_mov_b64 s[92:93], s[94:95]"); stamp_out(a, 24, 9, 0)
        a.lab("k1_end2")
    a("s_endpgm")

def main():
    a = Asm()
    hdr = open(f"cdna_kernels/{NAME}.s.ref").read().split("; Override launch")[0]
    import gen3
    launches = ["; @launch kernel=k0_kernel grid=(512,1,1) block=(64,1,1) lds=0",
                f"; @launch kernel=k1_kernel grid=(256,1,1) block=(512,1,1) lds={K1_LDS}", gen3.LAUNCH]
    out = hdr + "\n".join(launches) + "\n" + '.amdgcn_target "amdgcn-amd-amdhsa--gfx950"\n.text\n'
    gen_k0(a); gen_k1(a); gen3.gen(a)
    out += "\n".join(a.l) + "\n" + '.section .rodata,"a"\n' + kdesc("k0_kernel", 136) + kdesc("k1_kernel", 256) + gen3.desc()
    dst = sys.argv[1] if len(sys.argv) > 1 else f"cdna_kernels/{NAME}.s"
    open(dst, "w").write(out)
if __name__ == "__main__": main()
```

```python
import sys, re, os
NAME = "recurrent_scan__linear_kernel_hedgehog__glu_gated_swiglu__prompt"
MB = 1 << 20
XN_OFF, H_OFF, PHI_OFF, KV_OFF = 0, 2 * MB, 8 * MB, 12 * MB
Z_OFF = KV_OFF + 65536
WS_SIZE = 16 * MB
LOG2E = 0x3fb8aa3b
STAMP = bool(os.environ.get('STAMP'))
PFV = int(os.environ.get('PFV', '0'))
PREFETCH = int(os.environ.get('PREFETCH', '3'))

class Asm:
    def __init__(s): s.l = []
    def __call__(s, t):
        m = re.search(r"offset:(\d+)", t)
        if m and t.startswith("buffer_"): assert int(m.group(1)) <= 4095, t
        if m and t.startswith("ds_"): assert int(m.group(1)) <= 65535, t
        if re.match(r"buffer_store_dwordx[24] ", t): t += " sc1"
        s.l.append("    " + t)
    def lab(s, t): s.l.append(t + ":")
    def nop(s, n):
        while n > 0:
            k = min(n, 16); s(f"s_nop {k-1}"); n -= k
    def srd(s, d, lo, hi, size):
        s(f"s_mov_b32 s{d}, s{lo}"); s(f"s_and_b32 s{d+1}, s{hi}, 0xffff")
        s(f"s_mov_b32 s{d+2}, {size}"); s(f"s_mov_b32 s{d+3}, 0x00020000")
    def head(s, name):
        s.l += [".p2align 8", f".globl {name}", f".type {name},@function"]; s.lab(name)

def stamp(a, i):
    if STAMP: a(f"s_memtime s[{76+2*i}:{77+2*i}]")
def stamp_out(a, srd, n, tag):
    if not STAMP: return
    a(f"s_memrealtime s[{76+2*n}:{77+2*n}]")
    a("s_waitcnt lgkmcnt(0)")
    a("s_lshl_b32 s74, s2, 3"); a("s_add_u32 s74, s74, s14"); a("s_lshl_b32 s74, s74, 7"); a(f"s_add_u32 s74, s74, {14*MB + tag*(1<<19)}")
    a("v_mov_b32 v250, s74")
    for i in range(2 * (n + 1)):
        a(f"v_mov_b32 v251, s{76+i}"); a(f"buffer_store_dword v251, v250, s[{srd}:{srd+3}], 0 offen offset:{4*i}")
def vr(a, n): return f"v[{a}:{a+n-1}]"
def kdesc(name, vgpr, sgpr=100):
    return f""".p2align 6
.amdhsa_kernel {name}
  .amdhsa_next_free_vgpr {vgpr}
  .amdhsa_next_free_sgpr {sgpr}
  .amdhsa_accum_offset {(vgpr+3)//4*4}
  .amdhsa_group_segment_fixed_size 0
  .amdhsa_kernarg_size 88
  .amdhsa_user_sgpr_count 2
  .amdhsa_user_sgpr_kernarg_segment_ptr 1
  .amdhsa_system_sgpr_workgroup_id_x 1
.end_amdhsa_kernel
"""
def rb_pair(a, x0, x1, t):
    a(f"v_cvt_pk_bf16_f32 v{t}, v{x0}, v{x1}")
    a(f"v_lshlrev_b32 v{x0}, 16, v{t}"); a(f"v_and_b32 v{x1}, 0xffff0000, v{t}")

def gen_k0(a):
    a.head("k0_kernel")
    a("s_cmp_ge_u32 s2, 512"); a("s_cbranch_scc1 k0_end")
    a("s_load_dwordx2 s[4:5], s[0:1], 0"); a("s_load_dwordx2 s[6:7], s[0:1], 80")
    a("v_and_b32 v1, 15, v0"); a("v_lshrrev_b32 v2, 4, v0")
    a("s_lshl_b32 s3, s2, 12")
    a("v_lshlrev_b32 v3, 10, v2"); a("v_lshl_add_u32 v3, v1, 4, v3"); a("v_add_u32 v3, s3, v3")
    a("s_waitcnt lgkmcnt(0)")
    a.srd(8, 4, 5, 2 * MB); a.srd(12, 6, 7, WS_SIZE)
    for c in range(4): a(f"buffer_load_dwordx4 {vr(4+4*c,4)}, v3, s[8:11], 0 offen offset:{256*c}")
    npf = 0
    if PREFETCH:
        a("s_load_dwordx2 s[20:21], s[0:1], 8")
        a("s_load_dwordx2 s[22:23], s[0:1], 24")
        a("s_load_dwordx4 s[24:27], s[0:1], 40")
        a("s_load_dwordx2 s[28:29], s[0:1], 56")
        a("s_and_b32 s30, s2, 7"); a("s_lshr_b32 s31, s2, 3")
        a("v_lshrrev_b32 v70, 3, v0"); a("s_lshl_b32 s32, s31, 3"); a("v_add_u32 v70, s32, v70")
        a("v_and_b32 v71, 7, v0")
        a("s_waitcnt lgkmcnt(0)")
        a.srd(36, 20, 21, 512 * 1536 * 2); a.srd(40, 24, 25, 512 * 1376 * 2); a.srd(44, 26, 27, 512 * 1376 * 2)
        a("v_lshrrev_b32 v72, 1, v71"); a("v_cmp_eq_u32 vcc, 3, v72"); a.nop(2); a("v_cndmask_b32 v72, v72, 0, vcc")
        a("v_lshlrev_b32 v72, 10, v72"); a("v_and_b32 v73, 1, v71"); a("v_lshl_add_u32 v72, v73, 6, v72")
        a("v_mul_u32_u24 v73, 3072, v70"); a("v_add_u32 v72, v72, v73")
        a("s_lshl_b32 s33, s30, 7")
        a("buffer_load_dword v128, v72, s[36:39], s33 offen")
        a("v_mul_u32_u24 v72, 48, v71"); a("v_mul_u32_u24 v73, 2752, v70"); a("v_add_u32 v72, v72, v73")
        a("s_mul_i32 s33, s30, 352")
        a("buffer_load_dword v129, v72, s[40:43], s33 offen"); a("buffer_load_dword v130, v72, s[44:47], s33 offen")
        npf = 3
        if PREFETCH == 2:
            a.srd(36, 28, 29, 1376 * 1024); a.srd(40, 22, 23, 512 * 1024)
            a("v_lshlrev_b32 v72, 7, v0"); a("s_mul_i32 s44, s31, 24576")
            for i in range(3):
                a(f"s_add_u32 s45, s44, {i*8192}"); a(f"buffer_load_dword v{132+i}, v72, s[36:39], s45 offen")
            a("s_lshl_b32 s44, s31, 13"); a("buffer_load_dword v135, v72, s[40:43], s44 offen")
            npf = 7
    a("s_cmp_ge_u32 s2, 68"); a("s_cbranch_scc1 k0_nz")
    for i in range(4): a(f"v_mov_b32 v{20+i}, 0")
    a("s_lshl_b32 s16, s2, 10"); a(f"s_add_u32 s16, s16, {KV_OFF}")
    a("v_lshlrev_b32 v24, 4, v0"); a("v_add_u32 v24, s16, v24")
    a("buffer_store_dwordx4 v[20:23], v24, s[12:15], 0 offen")
    a.lab("k0_nz")
    a(f"s_waitcnt vmcnt({npf})")
    for i in range(16):
        a(f"v_lshlrev_b32 v{32+2*i}, 16, v{4+i}"); a(f"v_and_b32 v{33+2*i}, 0xffff0000, v{4+i}")
    for i in range(16): a(f"v_add_f32 v{64+i}, v{32+2*i}, v{33+2*i}")
    n = 16
    while n > 1:
        for i in range(n // 2): a(f"v_add_f32 v{64+i}, v{64+i}, v{64+i+n//2}")
        n //= 2
    def red16(r):
        for sh in (8, 4, 2, 1):
            a.nop(2); a(f"v_add_f32_dpp v{r}, v{r}, v{r} row_ror:{sh} row_mask:0xf bank_mask:0xf")
    red16(64)
    a("v_mul_f32 v64, 0x3b000000, v64")
    a("v_cvt_pk_bf16_f32 v65, v64, v64"); a("v_lshlrev_b32 v65, 16, v65")
    for i in range(32): a(f"v_sub_f32 v{80+i}, v{32+i}, v64")
    for i in range(16): a(f"v_mul_f32 v{112+i}, v{80+2*i}, v{80+2*i}")
    for i in range(16): a(f"v_fmac_f32 v{112+i}, v{81+2*i}, v{81+2*i}")
    n = 16
    while n > 1:
        for i in range(n // 2): a(f"v_add_f32 v{112+i}, v{112+i}, v{112+i+n//2}")
        n //= 2
    red16(112)
    a("v_mul_f32 v66, 0x3b000000, v112")
    a("v_cvt_pk_bf16_f32 v66, v66, v66"); a("v_lshlrev_b32 v66, 16, v66")
    a("v_add_f32 v66, 0x3727c5ac, v66")
    a("v_cvt_pk_bf16_f32 v66, v66, v66"); a("v_lshlrev_b32 v66, 16, v66")
    a("v_sqrt_f32 v66, v66"); a.nop(1)
    a("v_cvt_pk_bf16_f32 v66, v66, v66"); a("v_lshlrev_b32 v66, 16, v66")
    a("v_rcp_f32 v66, v66"); a.nop(1)
    for i in range(32): a(f"v_sub_f32 v{80+i}, v{32+i}, v65")
    for i in range(16): a(f"v_cvt_pk_bf16_f32 v{112+i}, v{80+2*i}, v{81+2*i}")
    for i in range(16):
        a(f"v_lshlrev_b32 v{80+2*i}, 16, v{112+i}"); a(f"v_and_b32 v{81+2*i}, 0xffff0000, v{112+i}")
    for i in range(32): a(f"v_mul_f32 v{80+i}, v{80+i}, v66")
    for i in range(16): a(f"v_cvt_pk_bf16_f32 v{4+i}, v{80+2*i}, v{81+2*i}")
    a("s_lshr_b32 s16, s2, 2"); a("s_lshl_b32 s16, s16, 14"); a("s_and_b32 s17, s2, 3"); a("s_lshl_b32 s17, s17, 6"); a("s_add_u32 s16, s16, s17")
    a("v_lshrrev_b32 v20, 2, v1"); a("v_lshlrev_b32 v20, 10, v20"); a("v_and_b32 v21, 3, v1"); a("v_lshl_add_u32 v20, v21, 8, v20")
    a("v_lshl_add_u32 v20, v2, 4, v20"); a("v_add_u32 v20, s16, v20")
    for c in range(4):
        a(f"s_movk_i32 s17, {4096*c}")
        a(f"buffer_store_dwordx4 {vr(4+4*c,4)}, v20, s[12:15], s17 offen")
    a.lab("k0_end"); a("s_endpgm")

AOFF = 22528
STG = AOFF + 8192 + 1024
NSLOT = 5
WPHI_LDS = STG * NSLOT
K1_LDS = WPHI_LDS + 2048
SCR_LDS = AOFF + 8192
NST = 16
BR = 32
AR = 48
ACC = 160
SL, S1 = 62, 64

class LQ:
    def __init__(s, a): s.a = a; s.q = []
    def issue(s, tag, text): s.a(text); s.q.append(tag)
    def need(s, tags):
        idx = max((i for i, t in enumerate(s.q) if t in tags), default=-1)
        if idx < 0: return
        k = len(s.q) - 1 - idx
        s.a(f"s_waitcnt lgkmcnt({min(k,15)})")
        s.q = s.q[idx + 1:] if k <= 15 else s.q[len(s.q) - 15:]

def k1_dma(a, stage, nd):
    sl = stage % NSLOT
    for i in range(nd):
        a(f"s_add_u32 m0, s{52+i}, {sl*STG}")
        a(f"s_mul_i32 s60, s{56+i}, {stage}")
        a(f"buffer_load_dwordx4 v{20+i}, s[{36+4*i}:{39+4*i}], s60 offen lds")

def k1_main(a, units, RS, nd):
    lq = LQ(a)
    n = len(units)
    seq = [(st, i) for st in range(NST) for i in range(n)]
    def rd(k):
        st, i = seq[k]
        sl = st % NSLOT
        if i == 0:
            for b in range(2):
                lq.issue(('A', st, b), f"ds_read_b128 {vr(AR+((st&1)*2+b)*4,4)}, v{27+sl//2} offset:{(sl%2)*STG+b*1024}")
        off = units[i][0]; br = BR + (k % 4) * 4
        base = 16 + sl // 2; o2 = (sl % 2) * STG
        lq.issue(('B', k), f"ds_read_b64_tr_b16 {vr(br,2)}, v{base} offset:{o2+off}")
        lq.issue(('B', k), f"ds_read_b64_tr_b16 {vr(br+2,2)}, v{base} offset:{o2+off+16*RS}")
    for st in range(4): k1_dma(a, st, nd)
    stamp(a, 5)
    a(f"s_waitcnt vmcnt({2*nd})"); a("s_barrier")
    stamp(a, 1)
    for k in range(3): rd(k)
    for k, (st, i) in enumerate(seq):
        if i == 0:
            if st > 0:
                rem = max(0, min(st + 3, NST - 1) - (st + 1))
                a(f"s_waitcnt vmcnt({rem*nd})"); a("s_barrier")
            if st == 8: stamp(a, 2)
            if st + 4 < NST: k1_dma(a, st + 4, nd)
        if k + 3 < len(seq): rd(k + 3)
        lq.need({('B', k), ('A', st, 0), ('A', st, 1)})
        off, ac, tr = units[i]; br = BR + (k % 4) * 4
        for b in range(2):
            ar = AR + ((st & 1) * 2 + b) * 4; d = ac + b * 4
            c = "0" if st == 0 else vr(d, 4)
            if tr: a(f"v_mfma_f32_16x16x32_bf16 {vr(d,4)}, {vr(br,4)}, {vr(ar,4)}, {c}")
            else: a(f"v_mfma_f32_16x16x32_bf16 {vr(d,4)}, {vr(ar,4)}, {vr(br,4)}, {c}")

def phi_multi(a, blocks, ones):
    n = len(blocks)
    B = [dict(ac=ac, wp=wp, t0=T, p=T+2, e=T+6, f=T+10, mx=T+14, nm=T+15, c=T+16, d=T+17, s=T+18, op=op, om=om) for ac, wp, T, op, om in blocks]
    def each(fn):
        for b in B: fn(b)
    each(lambda b: (a(f"v_cvt_pk_bf16_f32 v{b['t0']}, v{b['ac']}, v{b['ac']+1}"), a(f"v_cvt_pk_bf16_f32 v{b['t0']+1}, v{b['ac']+2}, v{b['ac']+3}")))
    a.nop(1)
    each(lambda b: a(f"v_mfma_f32_16x16x16_bf16 {vr(b['p'],4)}, {vr(b['wp'],2)}, {vr(b['t0'],2)}, 0"))
    a.nop(8)
    each(lambda b: (a(f"v_cvt_pk_bf16_f32 v{b['t0']}, v{b['p']}, v{b['p']+1}"), a(f"v_cvt_pk_bf16_f32 v{b['t0']+1}, v{b['p']+2}, v{b['p']+3}")))
    each(lambda b: (a(f"v_lshlrev_b32 v{b['p']}, 16, v{b['t0']}"), a(f"v_and_b32 v{b['p']+1}, 0xffff0000, v{b['t0']}"),
                    a(f"v_lshlrev_b32 v{b['p']+2}, 16, v{b['t0']+1}"), a(f"v_and_b32 v{b['p']+3}, 0xffff0000, v{b['t0']+1}")))
    each(lambda b: (a(f"v_max3_f32 v{b['mx']}, v{b['p']}, v{b['p']+1}, v{b['p']+2}"), a(f"v_max3_f32 v{b['nm']}, -v{b['p']}, -v{b['p']+1}, -v{b['p']+2}")))
    each(lambda b: (a(f"v_max_f32 v{b['mx']}, v{b['mx']}, v{b['p']+3}"), a(f"v_max_f32_e64 v{b['nm']}, v{b['nm']}, -v{b['p']+3}")))
    pad = max(0, 2 - (n - 1))
    a.nop(1 if n > 1 else 2)
    each(lambda b: a(f"v_permlane32_swap_b32 v{b['mx']}, v{b['nm']}"))
    each(lambda b: a(f"v_max_f32 v{b['c']}, v{b['mx']}, v{b['nm']}"))
    each(lambda b: a(f"v_mov_b32 v{b['d']}, v{b['c']}"))
    a.nop(pad)
    each(lambda b: a(f"v_permlane16_swap_b32 v{b['c']}, v{b['d']}"))
    each(lambda b: a(f"v_max_f32 v{b['mx']}, v{b['c']}, v{b['d']}"))
    each(lambda b: a(f"v_mov_b32 v{b['nm']}, v{b['mx']}"))
    a.nop(pad)
    each(lambda b: a(f"v_permlane32_swap_b32 v{b['mx']}, v{b['nm']}"))
    each(lambda b: a(f"v_pk_mul_f32 {vr(b['mx'],2)}, {vr(b['mx'],2)}, s[{SL}:{SL+1}]"))
    for i in (0, 2):
        each(lambda b: a(f"v_pk_fma_f32 {vr(b['e']+i,2)}, {vr(b['p']+i,2)}, s[{SL}:{SL+1}], {vr(b['mx'],2)} op_sel_hi:[1,1,0] neg_lo:[0,0,1] neg_hi:[0,0,1]"))
        each(lambda b: a(f"v_pk_fma_f32 {vr(b['f']+i,2)}, {vr(b['p']+i,2)}, s[{SL}:{SL+1}], {vr(b['mx'],2)} op_sel:[0,0,1] op_sel_hi:[1,1,1] neg_lo:[1,0,1] neg_hi:[1,0,1]"))
    for i in range(4):
        each(lambda b: (a(f"v_exp_f32 v{b['e']+i}, v{b['e']+i}"), a(f"v_exp_f32 v{b['f']+i}, v{b['f']+i}")))
    a.nop(1)
    each(lambda b: (a(f"v_pk_add_f32 {vr(b['mx'],2)}, {vr(b['e'],2)}, {vr(b['e']+2,2)}"), a(f"v_pk_add_f32 {vr(b['c'],2)}, {vr(b['f'],2)}, {vr(b['f']+2,2)}")))
    each(lambda b: (a(f"v_add_f32 v{b['mx']}, v{b['mx']}, v{b['nm']}"), a(f"v_add_f32 v{b['c']}, v{b['c']}, v{b['d']}")))
    a.nop(1)
    each(lambda b: (a(f"v_mfma_f32_16x16x4_f32 {vr(b['p'],4)}, v{ones}, v{b['mx']}, 0"), a(f"v_mfma_f32_16x16x4_f32 {vr(b['s'],4)}, v{ones}, v{b['c']}, 0")))
    a.nop(10)
    each(lambda b: (a(f"v_rcp_f32 v{b['mx']}, v{b['p']}"), a(f"v_rcp_f32 v{b['c']}, v{b['s']}")))
    a.nop(1)
    for i in (0, 2):
        each(lambda b: (a(f"v_pk_mul_f32 {vr(b['e']+i,2)}, {vr(b['e']+i,2)}, {vr(b['mx'],2)} op_sel_hi:[1,0]"),
                        a(f"v_pk_mul_f32 {vr(b['f']+i,2)}, {vr(b['f']+i,2)}, {vr(b['c'],2)} op_sel_hi:[1,0]")))
    each(lambda b: (a(f"v_cvt_pk_bf16_f32 v{b['op']}, v{b['e']}, v{b['e']+1}"), a(f"v_cvt_pk_bf16_f32 v{b['op']+1}, v{b['e']+2}, v{b['e']+3}"),
                    a(f"v_cvt_pk_bf16_f32 v{b['om']}, v{b['f']}, v{b['f']+1}"), a(f"v_cvt_pk_bf16_f32 v{b['om']+1}, v{b['f']+2}, v{b['f']+3}")))

def divmod_lane(a, dst_q, dst_r, src, d):
    magic = (1 << 24) // d + 1
    for o in range(0, 14336, 16): assert (o * magic) >> 24 == o // d, (d, o)
    a(f"v_mul_u32_u24 v{dst_q}, {magic}, v{src}"); a(f"v_lshrrev_b32 v{dst_q}, 24, v{dst_q}")
    a(f"v_mul_u32_u24 v{dst_r}, {d}, v{dst_q}"); a(f"v_sub_u32 v{dst_r}, v{src}, v{dst_r}")

def kmap(a, dst, sr, t):
    a(f"v_bfe_u32 v{dst}, v{sr}, 2, 2"); a(f"v_lshlrev_b32 v{dst}, 3, v{dst}")
    a(f"v_lshrrev_b32 v{t}, 4, v{sr}"); a(f"v_lshl_add_u32 v{dst}, v{t}, 2, v{dst}")
    a(f"v_and_b32 v{t}, 3, v{sr}"); a(f"v_add_u32 v{dst}, v{dst}, v{t}")

def k3pf(a, reg, tag):
    if PREFETCH < 3: return
    a("s_cmp_ge_u32 s14, 6"); a(f"s_cbranch_scc1 k1_pfo{tag}")
    a.srd(36, 98, 99, 1376 * 1024); a("s_mul_i32 s71, s15, 6"); a("s_add_u32 s71, s71, s14")
    a(f"s_branch k1_pfd{tag}")
    a.lab(f"k1_pfo{tag}")
    a.srd(36, 96, 97, 512 * 1024); a("s_lshl_b32 s71, s15, 1"); a("s_add_u32 s71, s71, s14"); a("s_sub_u32 s71, s71, 6")
    a.lab(f"k1_pfd{tag}")
    a("s_lshl_b32 s71, s71, 13"); a(f"v_lshlrev_b32 v{reg}, 7, v2")
    a(f"buffer_load_dword v{reg+1}, v{reg}, s[36:39], s71 offen")

def gen_k1(a):
    a.head("k1_kernel")
    a("s_cmp_ge_u32 s2, 256"); a("s_cbranch_scc1 k1_end")
    stamp(a, 0)
    if STAMP: a("s_memrealtime s[94:95]")
    a("s_load_dwordx4 s[4:7], s[0:1], 8")
    a("s_load_dwordx4 s[8:11], s[0:1], 40")
    a("s_load_dwordx2 s[12:13], s[0:1], 80")
    a("s_load_dwordx2 s[96:97], s[0:1], 24")
    a("s_load_dwordx2 s[98:99], s[0:1], 56")
    a("v_lshrrev_b32 v1, 6, v0"); a("v_and_b32 v2, 63, v0"); a.nop(1)
    a("v_readfirstlane_b32 s14, v1")
    a("s_and_b32 s66, s2, 7"); a("s_lshr_b32 s15, s2, 3")
    a("s_and_b32 s67, s15, 1")
    a("s_lshr_b32 s68, s15, 1")
    a("s_and_b32 s69, s14, 3")
    a("s_lshr_b32 s70, s14, 2")
    a(f"s_mov_b32 s{SL}, {LOG2E:#x}"); a(f"s_mov_b32 s{SL+1}, {LOG2E:#x}"); a(f"s_mov_b32 s{S1}, 1.0"); a(f"s_mov_b32 s{S1+1}, 1.0")
    a("s_lshl_b32 s71, s68, 7"); a("s_lshl_b32 s72, s69, 5"); a("s_add_u32 s73, s71, s72")
    a("v_lshlrev_b32 v3, 4, v2")
    a("s_waitcnt lgkmcnt(0)")
    stamp(a, 4)
    a.srd(24, 12, 13, WS_SIZE)
    a.srd(16, 4, 5, 512 * 1536 * 2)
    a.srd(28, 8, 9, 512 * 1376 * 2); a.srd(32, 10, 11, 512 * 1376 * 2)
    a("s_lshl_b32 s71, s69, 11"); a(f"s_add_u32 s71, s71, {AOFF}"); a("v_add_u32 v27, s71, v3")
    a(f"v_add_u32 v28, {2*STG}, v27"); a(f"v_add_u32 v29, {4*STG}, v27")
    a("s_cmp_eq_u32 s67, 1"); a("s_cbranch_scc1 k1_gu")
    a.srd(20, 6, 7, 16384)
    a("s_cmp_ge_u32 s14, 2"); a("s_cbranch_scc1 k1_q_nophi")
    a("s_lshl_b32 s71, s66, 11"); a("s_lshl_b32 s72, s14, 10"); a("s_add_u32 s71, s71, s72")
    a(f"s_add_u32 m0, s72, {WPHI_LDS}"); a.nop(1)
    a("buffer_load_dwordx4 v3, s[20:23], s71 offen lds")
    a.lab("k1_q_nophi")
    for i in range(3):
        a("s_mul_i32 s71, s14, 3"); a(f"s_add_u32 s71, s71, {i}")
        a("s_cmp_lt_u32 s71, 13"); a(f"s_cbranch_scc0 k1_qa{i}")
        for w in range(4): a(f"s_mov_b32 s{36+4*i+w}, s{16+w}")
        a(f"s_lshl_b32 s{52+i}, s71, 10"); a(f"s_mov_b32 s{56+i}, {32*3072}")
        a(f"v_add_u32 v4, s{52+i}, v3")
        divmod_lane(a, 5, 6, 4, 416); kmap(a, 7, 5, 8)
        a("v_mul_u32_u24 v7, 3072, v7")
        a("v_lshrrev_b32 v8, 7, v6"); a("v_cmp_eq_u32 vcc, 3, v8"); a.nop(2); a("v_cndmask_b32 v8, v8, 0, vcc")
        a("v_lshl_add_u32 v7, v8, 10, v7"); a("v_and_b32 v6, 127, v6"); a("v_add_u32 v7, v7, v6")
        a("s_lshl_b32 s72, s66, 7"); a(f"v_add_u32 v{20+i}, s72, v7")
        a(f"s_branch k1_qb{i}")
        a.lab(f"k1_qa{i}")
        for w in range(4): a(f"s_mov_b32 s{36+4*i+w}, s{24+w}")
        a("s_sub_u32 s71, s71, 13")
        a(f"s_lshl_b32 s{52+i}, s71, 10"); a(f"s_add_u32 s{52+i}, s{52+i}, {AOFF}"); a(f"s_movk_i32 s{56+i}, 1024")
        a("s_lshl_b32 s72, s68, 3"); a("s_add_u32 s72, s72, s71"); a("s_lshl_b32 s72, s72, 14")
        a("s_cmp_lt_u32 s71, 8"); a("s_cselect_b32 s72, s72, 0x40000000"); a(f"v_add_u32 v{20+i}, s72, v3")
        a(f"s_cselect_b32 s{61 if False else 52+i}, s{52+i}, {SCR_LDS}"); a(f"s_cselect_b32 s{75 if False else 56+i}, s{56+i}, 0")
        a.lab(f"k1_qb{i}")
    a("v_lshrrev_b32 v4, 2, v2"); a("v_mul_u32_u24 v4, 416, v4"); a("v_and_b32 v5, 3, v2"); a("v_lshl_add_u32 v4, v5, 3, v4")
    a("s_lshl_b32 s71, s70, 6"); a("v_add_u32 v16, s71, v4"); a(f"v_add_u32 v17, {2*STG}, v16"); a(f"v_add_u32 v18, {4*STG}, v16")
    def qacc(part, hh): return ACC + (part * 2 + hh) * 8
    units = [(part * 128 + hh * 32, qacc(part, hh), part != 2) for part in range(3) for hh in range(2)]
    k1_main(a, units, 416, 3)
    stamp(a, 3)
    if PFV in (0, 2): k3pf(a, 208, "q")
    a.nop(8); a("s_barrier")
    a(f"v_lshlrev_b32 v3, 3, v2"); a(f"v_add_u32 v3, {WPHI_LDS}, v3"); a("s_lshl_b32 s71, s70, 10"); a("v_add_u32 v3, s71, v3")
    for hh in range(2): a(f"ds_read_b64_tr_b16 {vr(32+hh*2,2)}, v3 offset:{hh*512}")
    a("v_mov_b32 v10, 1.0")
    a("v_lshlrev_b32 v4, 4, v2")
    a("s_lshl_b32 s71, s66, 12"); a("s_lshl_b32 s72, s70, 11"); a("s_add_u32 s71, s71, s72")
    a("s_lshl_b32 s72, s73, 11"); a("s_add_u32 s71, s71, s72")
    a(f"s_add_u32 s71, s71, {PHI_OFF}"); a("v_add_u32 v4, s71, v4"); a("v_add_u32 v5, 0x8000, v4")
    a("s_waitcnt lgkmcnt(0)")
    def blocks(part):
        return [(qacc(part, hh) + b * 4, 32 + hh * 2, 64 + (hh * 2 + b) * 24, 48 + (hh * 2 + b) * 4, 50 + (hh * 2 + b) * 4) for hh in range(2) for b in range(2)]
    phi_multi(a, blocks(0), 10)
    for hh in range(2):
        for b in range(2): a(f"buffer_store_dwordx4 {vr(48+(hh*2+b)*4,4)}, v{4+b}, s[24:27], 0 offen offset:{hh*1024}")
    a("v_and_b32 v6, 15, v2"); a("v_lshrrev_b32 v7, 4, v2"); a("v_lshlrev_b32 v11, 2, v7"); a("v_sub_u32 v6, v6, v11")
    a("v_mov_b32 v12, 0x3f80"); a("v_mov_b32 v13, 0x3f800000"); a("v_mov_b32 v8, 0"); a("v_mov_b32 v9, 0")
    a("v_cmp_eq_u32 vcc, 0, v6"); a.nop(2); a("v_cndmask_b32 v8, v8, v12, vcc")
    a("v_cmp_eq_u32 vcc, 1, v6"); a.nop(2); a("v_cndmask_b32 v8, v8, v13, vcc")
    a("v_cmp_eq_u32 vcc, 2, v6"); a.nop(2); a("v_cndmask_b32 v9, v9, v12, vcc")
    a("v_cmp_eq_u32 vcc, 3, v6"); a.nop(2); a("v_cndmask_b32 v9, v9, v13, vcc")
    for i in range(4): a(f"v_mov_b32 v{12+i}, 0x3f803f80")
    a("v_and_b32 v6, 15, v2"); a("v_lshlrev_b32 v6, 7, v6"); a("v_lshl_add_u32 v6, v7, 5, v6")
    a("s_mul_i32 s71, s69, 8704"); a("s_lshl_b32 s72, s70, 12"); a("s_add_u32 s72, s72, s71"); a("v_add_u32 v6, s72, v6")
    a("s_lshl_b32 s72, s70, 8"); a("s_add_u32 s72, s72, s71"); a("s_add_u32 s72, s72, 8192")
    a("v_lshlrev_b32 v7, 5, v7"); a("v_add_u32 v7, s72, v7")
    phi_multi(a, blocks(1), 10)
    a.nop(1)
    for k in range(4):
        for sg in range(2): a(f"v_mfma_f32_16x16x16_bf16 {vr(64+(k*2+sg)*4,4)}, {vr(48+k*4+sg*2,2)}, v[8:9], 0")
    for hh in range(2):
        for b in range(2):
            va = qacc(2, hh) + b * 4
            a(f"v_cvt_pk_bf16_f32 v{112+hh*4+2*b}, v{va}, v{va+1}"); a(f"v_cvt_pk_bf16_f32 v{113+hh*4+2*b}, v{va+2}, v{va+3}")
    a.nop(1)
    for hh in range(2):
        for b in range(2):
            for sg in range(2):
                t = 64 + ((hh * 2 + b) * 2 + sg) * 4; o = 96 + (hh * 2 + sg) * 4 + 2 * b
                a(f"v_cvt_pk_bf16_f32 v{o}, v{t}, v{t+1}"); a(f"v_cvt_pk_bf16_f32 v{o+1}, v{t+2}, v{t+3}")
    a.nop(2)
    for hh in range(2):
        for sg in range(2):
            a(f"v_mfma_f32_16x16x32_bf16 {vr(120+(hh*2+sg)*4,4)}, {vr(96+(hh*2+sg)*4,4)}, {vr(112+hh*4,4)}, 0")
            a(f"v_mfma_f32_16x16x32_bf16 {vr(136+(hh*2+sg)*4,4)}, {vr(96+(hh*2+sg)*4,4)}, v[12:15], 0")
    a.nop(8)
    for hh in range(2):
        for sg in range(2):
            a(f"ds_write_b128 v6, {vr(120+(hh*2+sg)*4,4)} offset:{hh*2048+sg*16}")
            a(f"ds_write_b128 v7, {vr(136+(hh*2+sg)*4,4)} offset:{hh*128+sg*16}")
    a("s_waitcnt lgkmcnt(0)"); a("s_barrier")
    a("v_lshlrev_b32 v3, 2, v0")
    a("s_lshl_b32 s71, s66, 13"); a(f"s_add_u32 s71, s71, {KV_OFF}"); a("v_add_u32 v4, s71, v3")
    for i in range(4):
        for w in range(4): a(f"ds_read_b32 v{16+i*4+w}, v3 offset:{w*8704+i*2048}")
    for w in range(4): a(f"ds_read_b32 v{32+w}, v3 offset:{w*8704+8192}")
    a("s_waitcnt lgkmcnt(0)")
    for i in range(5):
        a(f"v_add_f32 v{16+i*4}, v{16+i*4}, v{17+i*4}"); a(f"v_add_f32 v{18+i*4}, v{18+i*4}, v{19+i*4}")
    for i in range(5): a(f"v_add_f32 v{16+i*4}, v{16+i*4}, v{18+i*4}")
    a("s_movk_i32 s72, 4096")
    a("buffer_atomic_add_f32 v16, v4, s[24:27], 0 offen"); a("buffer_atomic_add_f32 v20, v4, s[24:27], 0 offen offset:2048")
    a("buffer_atomic_add_f32 v24, v4, s[24:27], s72 offen"); a("buffer_atomic_add_f32 v28, v4, s[24:27], s72 offen offset:2048")
    a("s_cmp_ge_u32 s14, 2"); a("s_cbranch_scc1 k1_end")
    a("s_lshl_b32 s71, s66, 9"); a(f"s_add_u32 s71, s71, {Z_OFF}"); a("v_add_u32 v4, s71, v3")
    a("buffer_atomic_add_f32 v32, v4, s[24:27], 0 offen")
    a("s_branch k1_end")
    a.lab("k1_gu")
    for i in range(4):
        a("s_lshl_b32 s71, s14, 2"); a(f"s_add_u32 s71, s71, {i}")
        a("s_cmp_lt_u32 s71, 22"); a(f"s_cbranch_scc0 k1_ga{i}")
        a("s_cmp_ge_u32 s71, 11")
        for w in range(4): a(f"s_cselect_b32 s{36+4*i+w}, s{32+w}, s{28+w}")
        a("s_cselect_b32 s72, 11, 0"); a(f"s_lshl_b32 s{52+i}, s71, 10"); a("s_sub_u32 s71, s71, s72"); a("s_lshl_b32 s71, s71, 10")
        a(f"s_mov_b32 s{56+i}, {32*2752}")
        a("v_add_u32 v4, s71, v3")
        divmod_lane(a, 5, 6, 4, 352); kmap(a, 7, 5, 8)
        a("v_mul_u32_u24 v7, 2752, v7"); a("v_add_u32 v7, v7, v6")
        a("s_mul_i32 s72, s66, 352"); a(f"v_add_u32 v{20+i}, s72, v7")
        a(f"s_branch k1_gb{i}")
        a.lab(f"k1_ga{i}")
        for w in range(4): a(f"s_mov_b32 s{36+4*i+w}, s{24+w}")
        a("s_sub_u32 s71, s71, 22")
        a(f"s_lshl_b32 s{52+i}, s71, 10"); a(f"s_add_u32 s{52+i}, s{52+i}, {AOFF}"); a(f"s_movk_i32 s{56+i}, 1024")
        a("s_lshl_b32 s72, s68, 3"); a("s_add_u32 s72, s72, s71"); a("s_lshl_b32 s72, s72, 14")
        a("s_cmp_lt_u32 s71, 8"); a("s_cselect_b32 s72, s72, 0x40000000"); a(f"v_add_u32 v{20+i}, s72, v3")
        a(f"s_cselect_b32 s{61 if False else 52+i}, s{52+i}, {SCR_LDS}"); a(f"s_cselect_b32 s{75 if False else 56+i}, s{56+i}, 0")
        a.lab(f"k1_gb{i}")
    a("v_lshrrev_b32 v4, 2, v2"); a("v_mul_u32_u24 v4, 352, v4"); a("v_and_b32 v5, 3, v2"); a("v_lshl_add_u32 v4, v5, 3, v4")
    a("s_mul_i32 s71, s70, 192"); a("v_add_u32 v16, s71, v4"); a(f"v_add_u32 v17, {2*STG}, v16"); a(f"v_add_u32 v18, {4*STG}, v16")
    def gacc(R, p): return ACC + (p * 2 + R) * 8
    def gunits(NP): return [(R * 11264 + p * 32, gacc(R, p), True) for p in range(NP) for R in range(2)]
    a("s_cmp_eq_u32 s70, 1"); a("s_cbranch_scc1 k1_gu1")
    k1_main(a, gunits(6), 352, 4); a("s_branch k1_gu_epi")
    a.lab("k1_gu1"); k1_main(a, gunits(5), 352, 4)
    a.lab("k1_gu_epi"); stamp(a, 3)
    if PFV in (0, 1): k3pf(a, 64, "g")
    a.nop(8)
    a("v_and_b32 v4, 15, v2"); a("v_lshlrev_b32 v4, 4, v4")
    a("v_lshrrev_b32 v5, 5, v2"); a("v_lshl_add_u32 v4, v5, 8, v4"); a("v_bfe_u32 v5, v2, 4, 1"); a("v_mul_u32_u24 v5, 44032, v5"); a("v_add_u32 v4, v4, v5")
    a("s_mul_i32 s71, s66, 11"); a("s_mul_i32 s72, s70, 6"); a("s_add_u32 s71, s71, s72")
    a("s_lshr_b32 s72, s73, 4"); a("s_mul_i32 s72, s72, 44032"); a("s_lshl_b32 s74, s71, 9"); a("s_add_u32 s72, s72, s74")
    a(f"s_add_u32 s72, s72, {H_OFF}"); a("v_add_u32 v4, s72, v4")
    for p in range(6):
        if p == 5: a("s_cmp_eq_u32 s70, 1"); a("s_cbranch_scc1 k1_end")
        a(f"s_add_u32 s72, s71, {p}"); a("s_cmp_ge_u32 s72, 86"); a("s_cbranch_scc1 k1_end")
        G = [gacc(0, p) + b * 4 for b in range(2)]; U = [gacc(1, p) + b * 4 for b in range(2)]; T = [48 + b * 8 for b in range(2)]
        for b in range(2):
            a(f"v_cvt_pk_bf16_f32 v{T[b]}, v{G[b]}, v{G[b]+1}"); a(f"v_cvt_pk_bf16_f32 v{T[b]+1}, v{G[b]+2}, v{G[b]+3}")
            a(f"v_cvt_pk_bf16_f32 v{T[b]+2}, v{U[b]}, v{U[b]+1}"); a(f"v_cvt_pk_bf16_f32 v{T[b]+3}, v{U[b]+2}, v{U[b]+3}")
        for b in range(2):
            for i in range(2):
                a(f"v_lshlrev_b32 v{G[b]+2*i}, 16, v{T[b]+i}"); a(f"v_and_b32 v{G[b]+2*i+1}, 0xffff0000, v{T[b]+i}")
                a(f"v_lshlrev_b32 v{U[b]+2*i}, 16, v{T[b]+2+i}"); a(f"v_and_b32 v{U[b]+2*i+1}, 0xffff0000, v{T[b]+2+i}")
        for b in range(2):
            for i in (0, 2): a(f"v_pk_mul_f32 {vr(T[b]+i,2)}, {vr(G[b]+i,2)}, s[{SL}:{SL+1}]")
        for b in range(2):
            for i in range(4): a(f"v_exp_f32 v{T[b]+i}, -v{T[b]+i}")
        a.nop(1)
        for b in range(2):
            for i in (0, 2): a(f"v_pk_add_f32 {vr(T[b]+i,2)}, {vr(T[b]+i,2)}, s[{S1}:{S1+1}]")
        for b in range(2):
            for i in range(4): a(f"v_rcp_f32 v{T[b]+i}, v{T[b]+i}")
        a.nop(1)
        for b in range(2):
            for i in (0, 2): a(f"v_pk_mul_f32 {vr(T[b]+i,2)}, {vr(T[b]+i,2)}, {vr(G[b]+i,2)}")
        for b in range(2):
            a(f"v_cvt_pk_bf16_f32 v{T[b]+4}, v{T[b]}, v{T[b]+1}"); a(f"v_cvt_pk_bf16_f32 v{T[b]+5}, v{T[b]+2}, v{T[b]+3}")
        for b in range(2):
            for i in range(2):
                a(f"v_lshlrev_b32 v{T[b]+2*i}, 16, v{T[b]+4+i}"); a(f"v_and_b32 v{T[b]+2*i+1}, 0xffff0000, v{T[b]+4+i}")
        for b in range(2):
            for i in (0, 2): a(f"v_pk_mul_f32 {vr(T[b]+i,2)}, {vr(T[b]+i,2)}, {vr(U[b]+i,2)}")
        for b in range(2):
            a(f"v_cvt_pk_bf16_f32 v{G[0]+2*b}, v{T[b]}, v{T[b]+1}"); a(f"v_cvt_pk_bf16_f32 v{G[0]+2*b+1}, v{T[b]+2}, v{T[b]+3}")
        a.nop(1)
        a(f"v_permlane16_swap_b32 v{G[0]}, v{G[0]+2}"); a(f"v_permlane16_swap_b32 v{G[0]+1}, v{G[0]+3}")
        a(f"buffer_store_dwordx4 {vr(G[0],4)}, v4, s[24:27], 0 offen offset:{p*512}")
    a.lab("k1_end")
    if PFV == 4:
        a("s_cmp_ge_u32 s2, 256"); a("s_cbranch_scc1 k1_end3")
        k3pf(a, 30, "e")
        a.lab("k1_end3")
    if STAMP:
        a("s_cmp_ge_u32 s2, 256"); a("s_cbranch_scc1 k1_end2")
        stamp(a, 6); a("s_waitcnt vmcnt(0)"); stamp(a, 7); a("s_mov_b64 s[92:93], s[94:95]"); stamp_out(a, 24, 9, 0)
        a.lab("k1_end2")
    a("s_endpgm")

def main():
    a = Asm()
    hdr = open(f"cdna_kernels/{NAME}.s.ref").read().split("; Override launch")[0]
    import gen3
    launches = ["; @launch kernel=k0_kernel grid=(512,1,1) block=(64,1,1) lds=0",
                f"; @launch kernel=k1_kernel grid=(256,1,1) block=(512,1,1) lds={K1_LDS}", gen3.LAUNCH]
    out = hdr + "\n".join(launches) + "\n" + '.amdgcn_target "amdgcn-amd-amdhsa--gfx950"\n.text\n'
    gen_k0(a); gen_k1(a); gen3.gen(a)
    out += "\n".join(a.l) + "\n" + '.section .rodata,"a"\n' + kdesc("k0_kernel", 136) + kdesc("k1_kernel", 256) + gen3.desc()
    dst = sys.argv[1] if len(sys.argv) > 1 else f"cdna_kernels/{NAME}.s"
    open(dst, "w").write(out)
if __name__ == "__main__": main()
```

```python
import sys, re, os
NAME = "recurrent_scan__linear_kernel_hedgehog__glu_gated_swiglu__prompt"
MB = 1 << 20
XN_OFF, H_OFF, PHI_OFF, KV_OFF = 0, 2 * MB, 8 * MB, 12 * MB
Z_OFF = KV_OFF + 65536
WS_SIZE = 16 * MB
LOG2E = 0x3fb8aa3b
STAMP = bool(os.environ.get('STAMP'))
PFV = int(os.environ.get('PFV', '4'))
PREFETCH = int(os.environ.get('PREFETCH', '3'))

class Asm:
    def __init__(s): s.l = []
    def __call__(s, t):
        m = re.search(r"offset:(\d+)", t)
        if m and t.startswith("buffer_"): assert int(m.group(1)) <= 4095, t
        if m and t.startswith("ds_"): assert int(m.group(1)) <= 65535, t
        if re.match(r"buffer_store_dwordx[24] ", t): t += " sc1"
        s.l.append("    " + t)
    def lab(s, t): s.l.append(t + ":")
    def nop(s, n):
        while n > 0:
            k = min(n, 16); s(f"s_nop {k-1}"); n -= k
    def srd(s, d, lo, hi, size):
        s(f"s_mov_b32 s{d}, s{lo}"); s(f"s_and_b32 s{d+1}, s{hi}, 0xffff")
        s(f"s_mov_b32 s{d+2}, {size}"); s(f"s_mov_b32 s{d+3}, 0x00020000")
    def head(s, name):
        s.l += [".p2align 8", f".globl {name}", f".type {name},@function"]; s.lab(name)

def stamp(a, i):
    if STAMP: a(f"s_memtime s[{76+2*i}:{77+2*i}]")
def stamp_out(a, srd, n, tag):
    if not STAMP: return
    a(f"s_memrealtime s[{76+2*n}:{77+2*n}]")
    a("s_waitcnt lgkmcnt(0)")
    a("s_lshl_b32 s74, s2, 3"); a("s_add_u32 s74, s74, s14"); a("s_lshl_b32 s74, s74, 7"); a(f"s_add_u32 s74, s74, {14*MB + tag*(1<<19)}")
    a("v_mov_b32 v250, s74")
    for i in range(2 * (n + 1)):
        a(f"v_mov_b32 v251, s{76+i}"); a(f"buffer_store_dword v251, v250, s[{srd}:{srd+3}], 0 offen offset:{4*i}")
def vr(a, n): return f"v[{a}:{a+n-1}]"
def kdesc(name, vgpr, sgpr=100):
    return f""".p2align 6
.amdhsa_kernel {name}
  .amdhsa_next_free_vgpr {vgpr}
  .amdhsa_next_free_sgpr {sgpr}
  .amdhsa_accum_offset {(vgpr+3)//4*4}
  .amdhsa_group_segment_fixed_size 0
  .amdhsa_kernarg_size 88
  .amdhsa_user_sgpr_count 2
  .amdhsa_user_sgpr_kernarg_segment_ptr 1
  .amdhsa_system_sgpr_workgroup_id_x 1
.end_amdhsa_kernel
"""
def rb_pair(a, x0, x1, t):
    a(f"v_cvt_pk_bf16_f32 v{t}, v{x0}, v{x1}")
    a(f"v_lshlrev_b32 v{x0}, 16, v{t}"); a(f"v_and_b32 v{x1}, 0xffff0000, v{t}")

def gen_k0(a):
    a.head("k0_kernel")
    a("s_cmp_ge_u32 s2, 512"); a("s_cbranch_scc1 k0_end")
    a("s_load_dwordx2 s[4:5], s[0:1], 0"); a("s_load_dwordx2 s[6:7], s[0:1], 80")
    a("v_and_b32 v1, 15, v0"); a("v_lshrrev_b32 v2, 4, v0")
    a("s_lshl_b32 s3, s2, 12")
    a("v_lshlrev_b32 v3, 10, v2"); a("v_lshl_add_u32 v3, v1, 4, v3"); a("v_add_u32 v3, s3, v3")
    a("s_waitcnt lgkmcnt(0)")
    a.srd(8, 4, 5, 2 * MB); a.srd(12, 6, 7, WS_SIZE)
    for c in range(4): a(f"buffer_load_dwordx4 {vr(4+4*c,4)}, v3, s[8:11], 0 offen offset:{256*c}")
    npf = 0
    if PREFETCH:
        a("s_load_dwordx2 s[20:21], s[0:1], 8")
        a("s_load_dwordx2 s[22:23], s[0:1], 24")
        a("s_load_dwordx4 s[24:27], s[0:1], 40")
        a("s_load_dwordx2 s[28:29], s[0:1], 56")
        a("s_and_b32 s30, s2, 7"); a("s_lshr_b32 s31, s2, 3")
        a("v_lshrrev_b32 v70, 3, v0"); a("s_lshl_b32 s32, s31, 3"); a("v_add_u32 v70, s32, v70")
        a("v_and_b32 v71, 7, v0")
        a("s_waitcnt lgkmcnt(0)")
        a.srd(36, 20, 21, 512 * 1536 * 2); a.srd(40, 24, 25, 512 * 1376 * 2); a.srd(44, 26, 27, 512 * 1376 * 2)
        a("v_lshrrev_b32 v72, 1, v71"); a("v_cmp_eq_u32 vcc, 3, v72"); a.nop(2); a("v_cndmask_b32 v72, v72, 0, vcc")
        a("v_lshlrev_b32 v72, 10, v72"); a("v_and_b32 v73, 1, v71"); a("v_lshl_add_u32 v72, v73, 6, v72")
        a("v_mul_u32_u24 v73, 3072, v70"); a("v_add_u32 v72, v72, v73")
        a("s_lshl_b32 s33, s30, 7")
        a("buffer_load_dword v128, v72, s[36:39], s33 offen")
        a("v_mul_u32_u24 v72, 48, v71"); a("v_mul_u32_u24 v73, 2752, v70"); a("v_add_u32 v72, v72, v73")
        a("s_mul_i32 s33, s30, 352")
        a("buffer_load_dword v129, v72, s[40:43], s33 offen"); a("buffer_load_dword v130, v72, s[44:47], s33 offen")
        npf = 3
        if PREFETCH == 2:
            a.srd(36, 28, 29, 1376 * 1024); a.srd(40, 22, 23, 512 * 1024)
            a("v_lshlrev_b32 v72, 7, v0"); a("s_mul_i32 s44, s31, 24576")
            for i in range(3):
                a(f"s_add_u32 s45, s44, {i*8192}"); a(f"buffer_load_dword v{132+i}, v72, s[36:39], s45 offen")
            a("s_lshl_b32 s44, s31, 13"); a("buffer_load_dword v135, v72, s[40:43], s44 offen")
            npf = 7
    a("s_cmp_ge_u32 s2, 68"); a("s_cbranch_scc1 k0_nz")
    for i in range(4): a(f"v_mov_b32 v{20+i}, 0")
    a("s_lshl_b32 s16, s2, 10"); a(f"s_add_u32 s16, s16, {KV_OFF}")
    a("v_lshlrev_b32 v24, 4, v0"); a("v_add_u32 v24, s16, v24")
    a("buffer_store_dwordx4 v[20:23], v24, s[12:15], 0 offen")
    a.lab("k0_nz")
    a(f"s_waitcnt vmcnt({npf})")
    for i in range(16):
        a(f"v_lshlrev_b32 v{32+2*i}, 16, v{4+i}"); a(f"v_and_b32 v{33+2*i}, 0xffff0000, v{4+i}")
    for i in range(16): a(f"v_add_f32 v{64+i}, v{32+2*i}, v{33+2*i}")
    n = 16
    while n > 1:
        for i in range(n // 2): a(f"v_add_f32 v{64+i}, v{64+i}, v{64+i+n//2}")
        n //= 2
    def red16(r):
        for sh in (8, 4, 2, 1):
            a.nop(2); a(f"v_add_f32_dpp v{r}, v{r}, v{r} row_ror:{sh} row_mask:0xf bank_mask:0xf")
    red16(64)
    a("v_mul_f32 v64, 0x3b000000, v64")
    a("v_cvt_pk_bf16_f32 v65, v64, v64"); a("v_lshlrev_b32 v65, 16, v65")
    for i in range(32): a(f"v_sub_f32 v{80+i}, v{32+i}, v64")
    for i in range(16): a(f"v_mul_f32 v{112+i}, v{80+2*i}, v{80+2*i}")
    for i in range(16): a(f"v_fmac_f32 v{112+i}, v{81+2*i}, v{81+2*i}")
    n = 16
    while n > 1:
        for i in range(n // 2): a(f"v_add_f32 v{112+i}, v{112+i}, v{112+i+n//2}")
        n //= 2
    red16(112)
    a("v_mul_f32 v66, 0x3b000000, v112")
    a("v_cvt_pk_bf16_f32 v66, v66, v66"); a("v_lshlrev_b32 v66, 16, v66")
    a("v_add_f32 v66, 0x3727c5ac, v66")
    a("v_cvt_pk_bf16_f32 v66, v66, v66"); a("v_lshlrev_b32 v66, 16, v66")
    a("v_sqrt_f32 v66, v66"); a.nop(1)
    a("v_cvt_pk_bf16_f32 v66, v66, v66"); a("v_lshlrev_b32 v66, 16, v66")
    a("v_rcp_f32 v66, v66"); a.nop(1)
    for i in range(32): a(f"v_sub_f32 v{80+i}, v{32+i}, v65")
    for i in range(16): a(f"v_cvt_pk_bf16_f32 v{112+i}, v{80+2*i}, v{81+2*i}")
    for i in range(16):
        a(f"v_lshlrev_b32 v{80+2*i}, 16, v{112+i}"); a(f"v_and_b32 v{81+2*i}, 0xffff0000, v{112+i}")
    for i in range(32): a(f"v_mul_f32 v{80+i}, v{80+i}, v66")
    for i in range(16): a(f"v_cvt_pk_bf16_f32 v{4+i}, v{80+2*i}, v{81+2*i}")
    a("s_lshr_b32 s16, s2, 2"); a("s_lshl_b32 s16, s16, 14"); a("s_and_b32 s17, s2, 3"); a("s_lshl_b32 s17, s17, 6"); a("s_add_u32 s16, s16, s17")
    a("v_lshrrev_b32 v20, 2, v1"); a("v_lshlrev_b32 v20, 10, v20"); a("v_and_b32 v21, 3, v1"); a("v_lshl_add_u32 v20, v21, 8, v20")
    a("v_lshl_add_u32 v20, v2, 4, v20"); a("v_add_u32 v20, s16, v20")
    for c in range(4):
        a(f"s_movk_i32 s17, {4096*c}")
        a(f"buffer_store_dwordx4 {vr(4+4*c,4)}, v20, s[12:15], s17 offen")
    a.lab("k0_end"); a("s_endpgm")

AOFF = 22528
STG = AOFF + 8192 + 1024
NSLOT = 5
WPHI_LDS = STG * NSLOT
K1_LDS = WPHI_LDS + 2048
SCR_LDS = AOFF + 8192
NST = 16
BR = 32
AR = 48
ACC = 160
SL, S1 = 62, 64

class LQ:
    def __init__(s, a): s.a = a; s.q = []
    def issue(s, tag, text): s.a(text); s.q.append(tag)
    def need(s, tags):
        idx = max((i for i, t in enumerate(s.q) if t in tags), default=-1)
        if idx < 0: return
        k = len(s.q) - 1 - idx
        s.a(f"s_waitcnt lgkmcnt({min(k,15)})")
        s.q = s.q[idx + 1:] if k <= 15 else s.q[len(s.q) - 15:]

def k1_dma(a, stage, nd):
    sl = stage % NSLOT
    for i in range(nd):
        a(f"s_add_u32 m0, s{52+i}, {sl*STG}")
        a(f"s_mul_i32 s60, s{56+i}, {stage}")
        a(f"buffer_load_dwordx4 v{20+i}, s[{36+4*i}:{39+4*i}], s60 offen lds")

def k1_main(a, units, RS, nd):
    lq = LQ(a)
    n = len(units)
    seq = [(st, i) for st in range(NST) for i in range(n)]
    def rd(k):
        st, i = seq[k]
        sl = st % NSLOT
        if i == 0:
            for b in range(2):
                lq.issue(('A', st, b), f"ds_read_b128 {vr(AR+((st&1)*2+b)*4,4)}, v{27+sl//2} offset:{(sl%2)*STG+b*1024}")
        off = units[i][0]; br = BR + (k % 4) * 4
        base = 16 + sl // 2; o2 = (sl % 2) * STG
        lq.issue(('B', k), f"ds_read_b64_tr_b16 {vr(br,2)}, v{base} offset:{o2+off}")
        lq.issue(('B', k), f"ds_read_b64_tr_b16 {vr(br+2,2)}, v{base} offset:{o2+off+16*RS}")
    for st in range(4): k1_dma(a, st, nd)
    stamp(a, 5)
    a(f"s_waitcnt vmcnt({2*nd})"); a("s_barrier")
    stamp(a, 1)
    for k in range(3): rd(k)
    for k, (st, i) in enumerate(seq):
        if i == 0:
            if st > 0:
                rem = max(0, min(st + 3, NST - 1) - (st + 1))
                a(f"s_waitcnt vmcnt({rem*nd})"); a("s_barrier")
            if st == 8: stamp(a, 2)
            if st + 4 < NST: k1_dma(a, st + 4, nd)
        if k + 3 < len(seq): rd(k + 3)
        lq.need({('B', k), ('A', st, 0), ('A', st, 1)})
        off, ac, tr = units[i]; br = BR + (k % 4) * 4
        for b in range(2):
            ar = AR + ((st & 1) * 2 + b) * 4; d = ac + b * 4
            c = "0" if st == 0 else vr(d, 4)
            if tr: a(f"v_mfma_f32_16x16x32_bf16 {vr(d,4)}, {vr(br,4)}, {vr(ar,4)}, {c}")
            else: a(f"v_mfma_f32_16x16x32_bf16 {vr(d,4)}, {vr(ar,4)}, {vr(br,4)}, {c}")

def phi_multi(a, blocks, ones):
    n = len(blocks)
    B = [dict(ac=ac, wp=wp, t0=T, p=T+2, e=T+6, f=T+10, mx=T+14, nm=T+15, c=T+16, d=T+17, s=T+18, op=op, om=om) for ac, wp, T, op, om in blocks]
    def each(fn):
        for b in B: fn(b)
    each(lambda b: (a(f"v_cvt_pk_bf16_f32 v{b['t0']}, v{b['ac']}, v{b['ac']+1}"), a(f"v_cvt_pk_bf16_f32 v{b['t0']+1}, v{b['ac']+2}, v{b['ac']+3}")))
    a.nop(1)
    each(lambda b: a(f"v_mfma_f32_16x16x16_bf16 {vr(b['p'],4)}, {vr(b['wp'],2)}, {vr(b['t0'],2)}, 0"))
    a.nop(8)
    each(lambda b: (a(f"v_cvt_pk_bf16_f32 v{b['t0']}, v{b['p']}, v{b['p']+1}"), a(f"v_cvt_pk_bf16_f32 v{b['t0']+1}, v{b['p']+2}, v{b['p']+3}")))
    each(lambda b: (a(f"v_lshlrev_b32 v{b['p']}, 16, v{b['t0']}"), a(f"v_and_b32 v{b['p']+1}, 0xffff0000, v{b['t0']}"),
                    a(f"v_lshlrev_b32 v{b['p']+2}, 16, v{b['t0']+1}"), a(f"v_and_b32 v{b['p']+3}, 0xffff0000, v{b['t0']+1}")))
    each(lambda b: (a(f"v_max3_f32 v{b['mx']}, v{b['p']}, v{b['p']+1}, v{b['p']+2}"), a(f"v_max3_f32 v{b['nm']}, -v{b['p']}, -v{b['p']+1}, -v{b['p']+2}")))
    each(lambda b: (a(f"v_max_f32 v{b['mx']}, v{b['mx']}, v{b['p']+3}"), a(f"v_max_f32_e64 v{b['nm']}, v{b['nm']}, -v{b['p']+3}")))
    pad = max(0, 2 - (n - 1))
    a.nop(1 if n > 1 else 2)
    each(lambda b: a(f"v_permlane32_swap_b32 v{b['mx']}, v{b['nm']}"))
    each(lambda b: a(f"v_max_f32 v{b['c']}, v{b['mx']}, v{b['nm']}"))
    each(lambda b: a(f"v_mov_b32 v{b['d']}, v{b['c']}"))
    a.nop(pad)
    each(lambda b: a(f"v_permlane16_swap_b32 v{b['c']}, v{b['d']}"))
    each(lambda b: a(f"v_max_f32 v{b['mx']}, v{b['c']}, v{b['d']}"))
    each(lambda b: a(f"v_mov_b32 v{b['nm']}, v{b['mx']}"))
    a.nop(pad)
    each(lambda b: a(f"v_permlane32_swap_b32 v{b['mx']}, v{b['nm']}"))
    each(lambda b: a(f"v_pk_mul_f32 {vr(b['mx'],2)}, {vr(b['mx'],2)}, s[{SL}:{SL+1}]"))
    for i in (0, 2):
        each(lambda b: a(f"v_pk_fma_f32 {vr(b['e']+i,2)}, {vr(b['p']+i,2)}, s[{SL}:{SL+1}], {vr(b['mx'],2)} op_sel_hi:[1,1,0] neg_lo:[0,0,1] neg_hi:[0,0,1]"))
        each(lambda b: a(f"v_pk_fma_f32 {vr(b['f']+i,2)}, {vr(b['p']+i,2)}, s[{SL}:{SL+1}], {vr(b['mx'],2)} op_sel:[0,0,1] op_sel_hi:[1,1,1] neg_lo:[1,0,1] neg_hi:[1,0,1]"))
    for i in range(4):
        each(lambda b: (a(f"v_exp_f32 v{b['e']+i}, v{b['e']+i}"), a(f"v_exp_f32 v{b['f']+i}, v{b['f']+i}")))
    a.nop(1)
    each(lambda b: (a(f"v_pk_add_f32 {vr(b['mx'],2)}, {vr(b['e'],2)}, {vr(b['e']+2,2)}"), a(f"v_pk_add_f32 {vr(b['c'],2)}, {vr(b['f'],2)}, {vr(b['f']+2,2)}")))
    each(lambda b: (a(f"v_add_f32 v{b['mx']}, v{b['mx']}, v{b['nm']}"), a(f"v_add_f32 v{b['c']}, v{b['c']}, v{b['d']}")))
    a.nop(1)
    each(lambda b: (a(f"v_mfma_f32_16x16x4_f32 {vr(b['p'],4)}, v{ones}, v{b['mx']}, 0"), a(f"v_mfma_f32_16x16x4_f32 {vr(b['s'],4)}, v{ones}, v{b['c']}, 0")))
    a.nop(10)
    each(lambda b: (a(f"v_rcp_f32 v{b['mx']}, v{b['p']}"), a(f"v_rcp_f32 v{b['c']}, v{b['s']}")))
    a.nop(1)
    for i in (0, 2):
        each(lambda b: (a(f"v_pk_mul_f32 {vr(b['e']+i,2)}, {vr(b['e']+i,2)}, {vr(b['mx'],2)} op_sel_hi:[1,0]"),
                        a(f"v_pk_mul_f32 {vr(b['f']+i,2)}, {vr(b['f']+i,2)}, {vr(b['c'],2)} op_sel_hi:[1,0]")))
    each(lambda b: (a(f"v_cvt_pk_bf16_f32 v{b['op']}, v{b['e']}, v{b['e']+1}"), a(f"v_cvt_pk_bf16_f32 v{b['op']+1}, v{b['e']+2}, v{b['e']+3}"),
                    a(f"v_cvt_pk_bf16_f32 v{b['om']}, v{b['f']}, v{b['f']+1}"), a(f"v_cvt_pk_bf16_f32 v{b['om']+1}, v{b['f']+2}, v{b['f']+3}")))

def divmod_lane(a, dst_q, dst_r, src, d):
    magic = (1 << 24) // d + 1
    for o in range(0, 14336, 16): assert (o * magic) >> 24 == o // d, (d, o)
    a(f"v_mul_u32_u24 v{dst_q}, {magic}, v{src}"); a(f"v_lshrrev_b32 v{dst_q}, 24, v{dst_q}")
    a(f"v_mul_u32_u24 v{dst_r}, {d}, v{dst_q}"); a(f"v_sub_u32 v{dst_r}, v{src}, v{dst_r}")

def kmap(a, dst, sr, t):
    a(f"v_bfe_u32 v{dst}, v{sr}, 2, 2"); a(f"v_lshlrev_b32 v{dst}, 3, v{dst}")
    a(f"v_lshrrev_b32 v{t}, 4, v{sr}"); a(f"v_lshl_add_u32 v{dst}, v{t}, 2, v{dst}")
    a(f"v_and_b32 v{t}, 3, v{sr}"); a(f"v_add_u32 v{dst}, v{dst}, v{t}")

def k3pf(a, reg, tag):
    if PREFETCH < 3: return
    a("s_cmp_ge_u32 s14, 6"); a(f"s_cbranch_scc1 k1_pfo{tag}")
    a.srd(36, 98, 99, 1376 * 1024); a("s_mul_i32 s71, s15, 6"); a("s_add_u32 s71, s71, s14")
    a(f"s_branch k1_pfd{tag}")
    a.lab(f"k1_pfo{tag}")
    a.srd(36, 96, 97, 512 * 1024); a("s_lshl_b32 s71, s15, 1"); a("s_add_u32 s71, s71, s14"); a("s_sub_u32 s71, s71, 6")
    a.lab(f"k1_pfd{tag}")
    a("s_lshl_b32 s71, s71, 13"); a(f"v_lshlrev_b32 v{reg}, 7, v2")
    a(f"buffer_load_dword v{reg+1}, v{reg}, s[36:39], s71 offen")

def gen_k1(a):
    a.head("k1_kernel")
    a("s_cmp_ge_u32 s2, 256"); a("s_cbranch_scc1 k1_end")
    stamp(a, 0)
    if STAMP: a("s_memrealtime s[94:95]")
    a("s_load_dwordx4 s[4:7], s[0:1], 8")
    a("s_load_dwordx4 s[8:11], s[0:1], 40")
    a("s_load_dwordx2 s[12:13], s[0:1], 80")
    a("s_load_dwordx2 s[96:97], s[0:1], 24")
    a("s_load_dwordx2 s[98:99], s[0:1], 56")
    a("v_lshrrev_b32 v1, 6, v0"); a("v_and_b32 v2, 63, v0"); a.nop(1)
    a("v_readfirstlane_b32 s14, v1")
    a("s_and_b32 s66, s2, 7"); a("s_lshr_b32 s15, s2, 3")
    a("s_and_b32 s67, s15, 1")
    a("s_lshr_b32 s68, s15, 1")
    a("s_and_b32 s69, s14, 3")
    a("s_lshr_b32 s70, s14, 2")
    a(f"s_mov_b32 s{SL}, {LOG2E:#x}"); a(f"s_mov_b32 s{SL+1}, {LOG2E:#x}"); a(f"s_mov_b32 s{S1}, 1.0"); a(f"s_mov_b32 s{S1+1}, 1.0")
    a("s_lshl_b32 s71, s68, 7"); a("s_lshl_b32 s72, s69, 5"); a("s_add_u32 s73, s71, s72")
    a("v_lshlrev_b32 v3, 4, v2")
    a("s_waitcnt lgkmcnt(0)")
    stamp(a, 4)
    a.srd(24, 12, 13, WS_SIZE)
    a.srd(16, 4, 5, 512 * 1536 * 2)
    a.srd(28, 8, 9, 512 * 1376 * 2); a.srd(32, 10, 11, 512 * 1376 * 2)
    a("s_lshl_b32 s71, s69, 11"); a(f"s_add_u32 s71, s71, {AOFF}"); a("v_add_u32 v27, s71, v3")
    a(f"v_add_u32 v28, {2*STG}, v27"); a(f"v_add_u32 v29, {4*STG}, v27")
    a("s_cmp_eq_u32 s67, 1"); a("s_cbranch_scc1 k1_gu")
    a.srd(20, 6, 7, 16384)
    a("s_cmp_ge_u32 s14, 2"); a("s_cbranch_scc1 k1_q_nophi")
    a("s_lshl_b32 s71, s66, 11"); a("s_lshl_b32 s72, s14, 10"); a("s_add_u32 s71, s71, s72")
    a(f"s_add_u32 m0, s72, {WPHI_LDS}"); a.nop(1)
    a("buffer_load_dwordx4 v3, s[20:23], s71 offen lds")
    a.lab("k1_q_nophi")
    for i in range(3):
        a("s_mul_i32 s71, s14, 3"); a(f"s_add_u32 s71, s71, {i}")
        a("s_cmp_lt_u32 s71, 13"); a(f"s_cbranch_scc0 k1_qa{i}")
        for w in range(4): a(f"s_mov_b32 s{36+4*i+w}, s{16+w}")
        a(f"s_lshl_b32 s{52+i}, s71, 10"); a(f"s_mov_b32 s{56+i}, {32*3072}")
        a(f"v_add_u32 v4, s{52+i}, v3")
        divmod_lane(a, 5, 6, 4, 416); kmap(a, 7, 5, 8)
        a("v_mul_u32_u24 v7, 3072, v7")
        a("v_lshrrev_b32 v8, 7, v6"); a("v_cmp_eq_u32 vcc, 3, v8"); a.nop(2); a("v_cndmask_b32 v8, v8, 0, vcc")
        a("v_lshl_add_u32 v7, v8, 10, v7"); a("v_and_b32 v6, 127, v6"); a("v_add_u32 v7, v7, v6")
        a("s_lshl_b32 s72, s66, 7"); a(f"v_add_u32 v{20+i}, s72, v7")
        a(f"s_branch k1_qb{i}")
        a.lab(f"k1_qa{i}")
        for w in range(4): a(f"s_mov_b32 s{36+4*i+w}, s{24+w}")
        a("s_sub_u32 s71, s71, 13")
        a(f"s_lshl_b32 s{52+i}, s71, 10"); a(f"s_add_u32 s{52+i}, s{52+i}, {AOFF}"); a(f"s_movk_i32 s{56+i}, 1024")
        a("s_lshl_b32 s72, s68, 3"); a("s_add_u32 s72, s72, s71"); a("s_lshl_b32 s72, s72, 14")
        a("s_cmp_lt_u32 s71, 8"); a("s_cselect_b32 s72, s72, 0x40000000"); a(f"v_add_u32 v{20+i}, s72, v3")
        a(f"s_cselect_b32 s{61 if False else 52+i}, s{52+i}, {SCR_LDS}"); a(f"s_cselect_b32 s{75 if False else 56+i}, s{56+i}, 0")
        a.lab(f"k1_qb{i}")
    a("v_lshrrev_b32 v4, 2, v2"); a("v_mul_u32_u24 v4, 416, v4"); a("v_and_b32 v5, 3, v2"); a("v_lshl_add_u32 v4, v5, 3, v4")
    a("s_lshl_b32 s71, s70, 6"); a("v_add_u32 v16, s71, v4"); a(f"v_add_u32 v17, {2*STG}, v16"); a(f"v_add_u32 v18, {4*STG}, v16")
    def qacc(part, hh): return ACC + (part * 2 + hh) * 8
    units = [(part * 128 + hh * 32, qacc(part, hh), part != 2) for part in range(3) for hh in range(2)]
    k1_main(a, units, 416, 3)
    stamp(a, 3)
    if PFV in (0, 2): k3pf(a, 240, "q")
    a.nop(8); a("s_barrier")
    a(f"v_lshlrev_b32 v3, 3, v2"); a(f"v_add_u32 v3, {WPHI_LDS}, v3"); a("s_lshl_b32 s71, s70, 10"); a("v_add_u32 v3, s71, v3")
    for hh in range(2): a(f"ds_read_b64_tr_b16 {vr(32+hh*2,2)}, v3 offset:{hh*512}")
    a("v_mov_b32 v10, 1.0")
    a("v_lshlrev_b32 v4, 4, v2")
    a("s_lshl_b32 s71, s66, 12"); a("s_lshl_b32 s72, s70, 11"); a("s_add_u32 s71, s71, s72")
    a("s_lshl_b32 s72, s73, 11"); a("s_add_u32 s71, s71, s72")
    a(f"s_add_u32 s71, s71, {PHI_OFF}"); a("v_add_u32 v4, s71, v4"); a("v_add_u32 v5, 0x8000, v4")
    a("s_waitcnt lgkmcnt(0)")
    def blocks(part):
        ob = 48 if part == 0 else 208
        return [(qacc(part, hh) + b * 4, 32 + hh * 2, 64 + (hh * 2 + b) * 24, ob + (hh * 2 + b) * 4, ob + 2 + (hh * 2 + b) * 4) for hh in range(2) for b in range(2)]
    phi_multi(a, blocks(0), 10)
    for hh in range(2):
        for b in range(2): a(f"buffer_store_dwordx4 {vr(48+(hh*2+b)*4,4)}, v{4+b}, s[24:27], 0 offen offset:{hh*1024}")
    a("v_and_b32 v6, 15, v2"); a("v_lshrrev_b32 v7, 4, v2"); a("v_lshlrev_b32 v11, 2, v7"); a("v_sub_u32 v6, v6, v11")
    a("v_mov_b32 v12, 0x3f80"); a("v_mov_b32 v13, 0x3f800000"); a("v_mov_b32 v8, 0"); a("v_mov_b32 v9, 0")
    a("v_cmp_eq_u32 vcc, 0, v6"); a.nop(2); a("v_cndmask_b32 v8, v8, v12, vcc")
    a("v_cmp_eq_u32 vcc, 1, v6"); a.nop(2); a("v_cndmask_b32 v8, v8, v13, vcc")
    a("v_cmp_eq_u32 vcc, 2, v6"); a.nop(2); a("v_cndmask_b32 v9, v9, v12, vcc")
    a("v_cmp_eq_u32 vcc, 3, v6"); a.nop(2); a("v_cndmask_b32 v9, v9, v13, vcc")
    for i in range(4): a(f"v_mov_b32 v{12+i}, 0x3f803f80")
    a("v_and_b32 v6, 15, v2"); a("v_lshlrev_b32 v6, 7, v6"); a("v_lshl_add_u32 v6, v7, 5, v6")
    a("s_mul_i32 s71, s69, 8704"); a("s_lshl_b32 s72, s70, 12"); a("s_add_u32 s72, s72, s71"); a("v_add_u32 v6, s72, v6")
    a("s_lshl_b32 s72, s70, 8"); a("s_add_u32 s72, s72, s71"); a("s_add_u32 s72, s72, 8192")
    a("v_lshlrev_b32 v7, 5, v7"); a("v_add_u32 v7, s72, v7")
    phi_multi(a, blocks(1), 10)
    a.nop(1)
    for k in range(4):
        for sg in range(2): a(f"v_mfma_f32_16x16x16_bf16 {vr(64+(k*2+sg)*4,4)}, {vr(208+k*4+sg*2,2)}, v[8:9], 0")
    for hh in range(2):
        for b in range(2):
            va = qacc(2, hh) + b * 4
            a(f"v_cvt_pk_bf16_f32 v{112+hh*4+2*b}, v{va}, v{va+1}"); a(f"v_cvt_pk_bf16_f32 v{113+hh*4+2*b}, v{va+2}, v{va+3}")
    a.nop(1)
    for hh in range(2):
        for b in range(2):
            for sg in range(2):
                t = 64 + ((hh * 2 + b) * 2 + sg) * 4; o = 96 + (hh * 2 + sg) * 4 + 2 * b
                a(f"v_cvt_pk_bf16_f32 v{o}, v{t}, v{t+1}"); a(f"v_cvt_pk_bf16_f32 v{o+1}, v{t+2}, v{t+3}")
    a.nop(2)
    for hh in range(2):
        for sg in range(2):
            a(f"v_mfma_f32_16x16x32_bf16 {vr(120+(hh*2+sg)*4,4)}, {vr(96+(hh*2+sg)*4,4)}, {vr(112+hh*4,4)}, 0")
            a(f"v_mfma_f32_16x16x32_bf16 {vr(136+(hh*2+sg)*4,4)}, {vr(96+(hh*2+sg)*4,4)}, v[12:15], 0")
    a.nop(8)
    for hh in range(2):
        for sg in range(2):
            a(f"ds_write_b128 v6, {vr(120+(hh*2+sg)*4,4)} offset:{hh*2048+sg*16}")
            a(f"ds_write_b128 v7, {vr(136+(hh*2+sg)*4,4)} offset:{hh*128+sg*16}")
    a("s_waitcnt lgkmcnt(0)"); a("s_barrier")
    a("v_lshlrev_b32 v3, 2, v0")
    a("s_lshl_b32 s71, s66, 13"); a(f"s_add_u32 s71, s71, {KV_OFF}"); a("v_add_u32 v4, s71, v3")
    for i in range(4):
        for w in range(4): a(f"ds_read_b32 v{16+i*4+w}, v3 offset:{w*8704+i*2048}")
    for w in range(4): a(f"ds_read_b32 v{32+w}, v3 offset:{w*8704+8192}")
    a("s_waitcnt lgkmcnt(0)")
    for i in range(5):
        a(f"v_add_f32 v{16+i*4}, v{16+i*4}, v{17+i*4}"); a(f"v_add_f32 v{18+i*4}, v{18+i*4}, v{19+i*4}")
    for i in range(5): a(f"v_add_f32 v{16+i*4}, v{16+i*4}, v{18+i*4}")
    a("s_movk_i32 s72, 4096")
    a("buffer_atomic_add_f32 v16, v4, s[24:27], 0 offen"); a("buffer_atomic_add_f32 v20, v4, s[24:27], 0 offen offset:2048")
    a("buffer_atomic_add_f32 v24, v4, s[24:27], s72 offen"); a("buffer_atomic_add_f32 v28, v4, s[24:27], s72 offen offset:2048")
    a("s_cmp_ge_u32 s14, 2"); a("s_cbranch_scc1 k1_end")
    a("s_lshl_b32 s71, s66, 9"); a(f"s_add_u32 s71, s71, {Z_OFF}"); a("v_add_u32 v4, s71, v3")
    a("buffer_atomic_add_f32 v32, v4, s[24:27], 0 offen")
    a("s_branch k1_end")
    a.lab("k1_gu")
    for i in range(4):
        a("s_lshl_b32 s71, s14, 2"); a(f"s_add_u32 s71, s71, {i}")
        a("s_cmp_lt_u32 s71, 22"); a(f"s_cbranch_scc0 k1_ga{i}")
        a("s_cmp_ge_u32 s71, 11")
        for w in range(4): a(f"s_cselect_b32 s{36+4*i+w}, s{32+w}, s{28+w}")
        a("s_cselect_b32 s72, 11, 0"); a(f"s_lshl_b32 s{52+i}, s71, 10"); a("s_sub_u32 s71, s71, s72"); a("s_lshl_b32 s71, s71, 10")
        a(f"s_mov_b32 s{56+i}, {32*2752}")
        a("v_add_u32 v4, s71, v3")
        divmod_lane(a, 5, 6, 4, 352); kmap(a, 7, 5, 8)
        a("v_mul_u32_u24 v7, 2752, v7"); a("v_add_u32 v7, v7, v6")
        a("s_mul_i32 s72, s66, 352"); a(f"v_add_u32 v{20+i}, s72, v7")
        a(f"s_branch k1_gb{i}")
        a.lab(f"k1_ga{i}")
        for w in range(4): a(f"s_mov_b32 s{36+4*i+w}, s{24+w}")
        a("s_sub_u32 s71, s71, 22")
        a(f"s_lshl_b32 s{52+i}, s71, 10"); a(f"s_add_u32 s{52+i}, s{52+i}, {AOFF}"); a(f"s_movk_i32 s{56+i}, 1024")
        a("s_lshl_b32 s72, s68, 3"); a("s_add_u32 s72, s72, s71"); a("s_lshl_b32 s72, s72, 14")
        a("s_cmp_lt_u32 s71, 8"); a("s_cselect_b32 s72, s72, 0x40000000"); a(f"v_add_u32 v{20+i}, s72, v3")
        a(f"s_cselect_b32 s{61 if False else 52+i}, s{52+i}, {SCR_LDS}"); a(f"s_cselect_b32 s{75 if False else 56+i}, s{56+i}, 0")
        a.lab(f"k1_gb{i}")
    a("v_lshrrev_b32 v4, 2, v2"); a("v_mul_u32_u24 v4, 352, v4"); a("v_and_b32 v5, 3, v2"); a("v_lshl_add_u32 v4, v5, 3, v4")
    a("s_mul_i32 s71, s70, 192"); a("v_add_u32 v16, s71, v4"); a(f"v_add_u32 v17, {2*STG}, v16"); a(f"v_add_u32 v18, {4*STG}, v16")
    def gacc(R, p): return ACC + (p * 2 + R) * 8
    def gunits(NP): return [(R * 11264 + p * 32, gacc(R, p), True) for p in range(NP) for R in range(2)]
    a("s_cmp_eq_u32 s70, 1"); a("s_cbranch_scc1 k1_gu1")
    k1_main(a, gunits(6), 352, 4); a("s_branch k1_gu_epi")
    a.lab("k1_gu1"); k1_main(a, gunits(5), 352, 4)
    a.lab("k1_gu_epi"); stamp(a, 3)
    if PFV in (0, 1, 5): k3pf(a, 64, "g")
    a.nop(8)
    a("v_and_b32 v4, 15, v2"); a("v_lshlrev_b32 v4, 4, v4")
    a("v_lshrrev_b32 v5, 5, v2"); a("v_lshl_add_u32 v4, v5, 8, v4"); a("v_bfe_u32 v5, v2, 4, 1"); a("v_mul_u32_u24 v5, 44032, v5"); a("v_add_u32 v4, v4, v5")
    a("s_mul_i32 s71, s66, 11"); a("s_mul_i32 s72, s70, 6"); a("s_add_u32 s71, s71, s72")
    a("s_lshr_b32 s72, s73, 4"); a("s_mul_i32 s72, s72, 44032"); a("s_lshl_b32 s74, s71, 9"); a("s_add_u32 s72, s72, s74")
    a(f"s_add_u32 s72, s72, {H_OFF}"); a("v_add_u32 v4, s72, v4")
    for p in range(6):
        if p == 5: a("s_cmp_eq_u32 s70, 1"); a("s_cbranch_scc1 k1_end")
        a(f"s_add_u32 s72, s71, {p}"); a("s_cmp_ge_u32 s72, 86"); a("s_cbranch_scc1 k1_end")
        G = [gacc(0, p) + b * 4 for b in range(2)]; U = [gacc(1, p) + b * 4 for b in range(2)]; T = [48 + b * 8 for b in range(2)]
        for b in range(2):
            a(f"v_cvt_pk_bf16_f32 v{T[b]}, v{G[b]}, v{G[b]+1}"); a(f"v_cvt_pk_bf16_f32 v{T[b]+1}, v{G[b]+2}, v{G[b]+3}")
            a(f"v_cvt_pk_bf16_f32 v{T[b]+2}, v{U[b]}, v{U[b]+1}"); a(f"v_cvt_pk_bf16_f32 v{T[b]+3}, v{U[b]+2}, v{U[b]+3}")
        for b in range(2):
            for i in range(2):
                a(f"v_lshlrev_b32 v{G[b]+2*i}, 16, v{T[b]+i}"); a(f"v_and_b32 v{G[b]+2*i+1}, 0xffff0000, v{T[b]+i}")
                a(f"v_lshlrev_b32 v{U[b]+2*i}, 16, v{T[b]+2+i}"); a(f"v_and_b32 v{U[b]+2*i+1}, 0xffff0000, v{T[b]+2+i}")
        for b in range(2):
            for i in (0, 2): a(f"v_pk_mul_f32 {vr(T[b]+i,2)}, {vr(G[b]+i,2)}, s[{SL}:{SL+1}]")
        for b in range(2):
            for i in range(4): a(f"v_exp_f32 v{T[b]+i}, -v{T[b]+i}")
        a.nop(1)
        for b in range(2):
            for i in (0, 2): a(f"v_pk_add_f32 {vr(T[b]+i,2)}, {vr(T[b]+i,2)}, s[{S1}:{S1+1}]")
        for b in range(2):
            for i in range(4): a(f"v_rcp_f32 v{T[b]+i}, v{T[b]+i}")
        a.nop(1)
        for b in range(2):
            for i in (0, 2): a(f"v_pk_mul_f32 {vr(T[b]+i,2)}, {vr(T[b]+i,2)}, {vr(G[b]+i,2)}")
        for b in range(2):
            a(f"v_cvt_pk_bf16_f32 v{T[b]+4}, v{T[b]}, v{T[b]+1}"); a(f"v_cvt_pk_bf16_f32 v{T[b]+5}, v{T[b]+2}, v{T[b]+3}")
        for b in range(2):
            for i in range(2):
                a(f"v_lshlrev_b32 v{T[b]+2*i}, 16, v{T[b]+4+i}"); a(f"v_and_b32 v{T[b]+2*i+1}, 0xffff0000, v{T[b]+4+i}")
        for b in range(2):
            for i in (0, 2): a(f"v_pk_mul_f32 {vr(T[b]+i,2)}, {vr(T[b]+i,2)}, {vr(U[b]+i,2)}")
        for b in range(2):
            a(f"v_cvt_pk_bf16_f32 v{G[0]+2*b}, v{T[b]}, v{T[b]+1}"); a(f"v_cvt_pk_bf16_f32 v{G[0]+2*b+1}, v{T[b]+2}, v{T[b]+3}")
        a.nop(1)
        a(f"v_permlane16_swap_b32 v{G[0]}, v{G[0]+2}"); a(f"v_permlane16_swap_b32 v{G[0]+1}, v{G[0]+3}")
        a(f"buffer_store_dwordx4 {vr(G[0],4)}, v4, s[24:27], 0 offen offset:{p*512}")
    a.lab("k1_end")
    if PFV in (4, 5):
        a("s_cmp_ge_u32 s2, 256"); a("s_cbranch_scc1 k1_end3")
        if PFV == 5: a("s_cmp_eq_u32 s67, 1"); a("s_cbranch_scc1 k1_end3")
        k3pf(a, 30, "e")
        a.lab("k1_end3")
    if STAMP:
        a("s_cmp_ge_u32 s2, 256"); a("s_cbranch_scc1 k1_end2")
        stamp(a, 6); a("s_waitcnt vmcnt(0)"); stamp(a, 7); a("s_mov_b64 s[92:93], s[94:95]"); stamp_out(a, 24, 9, 0)
        a.lab("k1_end2")
    a("s_endpgm")

def main():
    a = Asm()
    hdr = open(f"cdna_kernels/{NAME}.s.ref").read().split("; Override launch")[0]
    import gen3
    launches = ["; @launch kernel=k0_kernel grid=(512,1,1) block=(64,1,1) lds=0",
                f"; @launch kernel=k1_kernel grid=(256,1,1) block=(512,1,1) lds={K1_LDS}", gen3.LAUNCH]
    out = hdr + "\n".join(launches) + "\n" + '.amdgcn_target "amdgcn-amd-amdhsa--gfx950"\n.text\n'
    gen_k0(a); gen_k1(a); gen3.gen(a)
    out += "\n".join(a.l) + "\n" + '.section .rodata,"a"\n' + kdesc("k0_kernel", 136) + kdesc("k1_kernel", 256) + gen3.desc()
    dst = sys.argv[1] if len(sys.argv) > 1 else f"cdna_kernels/{NAME}.s"
    open(dst, "w").write(out)
if __name__ == "__main__": main()
```

```python
from __main__ import stamp, stamp_out, STAMP, vr, kdesc, rb_pair, MB, H_OFF, PHI_OFF, KV_OFF, Z_OFF, WS_SIZE, LOG2E
RED = 17408
K3_LDS = 131072 + 4096
LAUNCH = f"; @launch kernel=k3_kernel grid=(256,1,1) block=(512,1,1) lds={K3_LDS}"
def desc(): return kdesc("k3_kernel", 256)
ACC = 16
def acc(u, b): return ACC + (u * 4 + b) * 4
BF = 144

def gen(a):
    a.l.append(".p2align 8"); a.l.append(".globl k3_kernel"); a.l.append(".type k3_kernel,@function"); a.lab("k3_kernel")
    a("s_cmp_ge_u32 s2, 256"); a("s_cbranch_scc1 k3_end")
    stamp(a, 0)
    if STAMP: a("s_memrealtime s[94:95]")
    a("s_load_dwordx2 s[4:5], s[0:1], 0")
    a("s_load_dwordx2 s[6:7], s[0:1], 24")
    a("s_load_dwordx4 s[8:11], s[0:1], 56")
    a("s_load_dwordx2 s[12:13], s[0:1], 80")
    a("v_lshrrev_b32 v1, 6, v0"); a("v_and_b32 v2, 63, v0"); a.nop(1)
    a("v_readfirstlane_b32 s14, v1")
    a("s_and_b32 s3, s2, 7"); a("s_lshr_b32 s15, s2, 3")
    a("s_lshr_b32 s62, s15, 3"); a("s_lshl_b32 s3, s3, 2"); a("s_add_u32 s62, s62, s3"); a("s_lshl_b32 s62, s62, 6")
    a("s_and_b32 s63, s15, 7"); a("s_lshl_b32 s63, s63, 7")
    a(f"s_mov_b32 s61, {LOG2E:#x}")
    a("s_waitcnt lgkmcnt(0)")
    a.srd(16, 4, 5, 2 * MB); a.srd(20, 6, 7, 512 * 1024); a.srd(24, 12, 13, WS_SIZE)
    a.srd(28, 8, 9, 1376 * 1024); a.srd(32, 10, 11, 2 * MB)
    a("v_lshrrev_b32 v3, 3, v0"); a("v_add_u32 v3, s62, v3"); a("v_lshlrev_b32 v3, 10, v3")
    a("v_and_b32 v4, 7, v0"); a("v_lshl_add_u32 v3, v4, 4, v3"); a("v_add_u32 v3, s63, v3")
    a("buffer_load_dwordx4 v[12:15], v3, s[16:19], 0 offen")
    a("v_lshrrev_b32 v8, 2, v2"); a("v_lshlrev_b32 v8, 7, v8"); a("v_and_b32 v9, 3, v2"); a("v_lshl_add_u32 v8, v9, 3, v8")
    a("s_lshl_b32 s64, s14, 14"); a("v_add_u32 v8, s64, v8")
    a("v_bfe_u32 v9, v2, 3, 2")
    for u in range(4):
        a(f"v_xor_b32 v10, {u}, v9"); a(f"v_lshl_add_u32 v{4+u}, v10, 5, v8")
    a("v_bfe_u32 v8, v2, 1, 2"); a("v_bfe_u32 v9, v2, 4, 2"); a("v_xor_b32 v8, v8, v9"); a("v_lshlrev_b32 v8, 5, v8")
    a("v_and_b32 v9, 1, v2"); a("v_lshl_add_u32 v8, v9, 4, v8"); a("v_add_u32 v8, s63, v8")
    a("s_cmp_lt_u32 s14, 4"); a("s_cbranch_scc1 k3_swave")
    a("s_sub_u32 s69, s14, 4")
    a("v_lshrrev_b32 v9, 5, v2"); a("v_lshlrev_b32 v9, 3, v9"); a("v_bfe_u32 v10, v2, 3, 2"); a("v_add_u32 v9, v9, v10")
    a("v_lshl_add_u32 v8, v9, 10, v8")
    a("s_mul_i32 s65, s69, 11")
    a("v_lshlrev_b32 v9, 4, v2")
    a("s_lshr_b32 s66, s62, 4"); a("s_mul_i32 s66, s66, 44032"); a("s_lshl_b32 s67, s65, 10"); a("s_add_u32 s66, s66, s67")
    a(f"s_add_u32 s66, s66, {H_OFF}"); a("v_add_u32 v160, s66, v9")
    for b in range(1, 4): a(f"v_add_u32 v{160+b}, {b*44032}, v160")
    a("s_lshl_b32 s65, s65, 15")
    AR = 80
    def oload(t):
        a(f"s_movk_i32 s67, {t*1024}")
        for b in range(4):
            a(f"buffer_load_dwordx4 {vr(AR+(t%4)*16+b*4,4)}, v{160+b}, s[24:27], s67 offen")
        for q, dl in enumerate((0, 16, 4, 20)):
            a(f"s_add_u32 m0, s64, {(t%4)*4096+q*1024}")
            a(f"s_add_u32 s66, s65, {t*32768+dl*1024}")
            a(f"buffer_load_dwordx4 v8, s[28:31], s66 offen lds")
    NST = 11
    for t in range(3): oload(t)
    for t in range(NST):
        rem = min(2, NST - 1 - t)
        a(f"s_waitcnt vmcnt({8*rem})")
        if t == 0: stamp(a, 4)
        if t == 5: stamp(a, 5)
        if t == NST - 1: a("s_cmp_eq_u32 s14, 7"); a("s_cbranch_scc1 k3_red")
        for u in range(4):
            for j in range(2):
                a(f"ds_read_b64_tr_b16 {vr(BF+u*4+2*j,2)}, v{4+u} offset:{(t%4)*4096+j*2048}")
        if t + 3 < NST: oload(t + 3)
        for u in range(4):
            a(f"s_waitcnt lgkmcnt({6-2*u})")
            for b in range(4):
                c = "0" if t == 0 else vr(acc(u, b), 4)
                a(f"v_mfma_f32_16x16x32_bf16 {vr(acc(u,b),4)}, {vr(BF+u*4,4)}, {vr(AR+(t%4)*16+b*4,4)}, {c}")
    a("s_branch k3_red")
    a.lab("k3_swave")
    a("v_lshrrev_b32 v9, 3, v2"); a("v_lshl_add_u32 v8, v9, 10, v8")
    a("s_mov_b32 s65, s14")
    a("s_lshl_b32 s66, s65, 17")
    a("s_lshl_b32 s67, s65, 10"); a("s_add_u32 m0, s67, 131072"); a(f"s_add_u32 s67, s67, {Z_OFF}"); a("v_lshlrev_b32 v9, 4, v2")
    a("buffer_load_dwordx4 v9, s[24:27], s67 offen lds")
    for p in range(4):
        for q in range(4):
            a(f"s_add_u32 m0, s64, {p*4096+q*1024}")
            a(f"s_add_u32 s67, s66, {p*32768+q*8192}")
            a(f"buffer_load_dwordx4 v8, s[20:23], s67 offen lds")
    a("v_lshlrev_b32 v9, 4, v2"); a("v_lshrrev_b32 v10, 4, v2")
    a("s_lshl_b32 s67, s65, 13"); a("s_lshl_b32 s68, s62, 11"); a("s_add_u32 s67, s67, s68"); a(f"s_add_u32 s67, s67, {PHI_OFF}"); a("v_add_u32 v240, s67, v9")
    for b in range(1, 4): a(f"v_add_u32 v{240+b}, {b*32768}, v240")
    a("v_and_b32 v9, 15, v2"); a("v_lshlrev_b32 v9, 7, v9"); a("v_lshl_add_u32 v9, v10, 5, v9")
    a("s_lshl_b32 s67, s65, 14"); a(f"s_add_u32 s67, s67, {KV_OFF}"); a("v_add_u32 v244, s67, v9")
    a("s_lshl_b32 s67, s65, 10"); a("s_add_u32 s67, s67, 131072"); a("v_lshlrev_b32 v9, 5, v10"); a("v_add_u32 v245, s67, v9")
    LB = 80
    def sload(p):
        base = LB + (p % 2) * 64
        for hh in range(2):
            h = 2 * p + hh
            a(f"s_movk_i32 s67, {h*1024}")
            for b in range(4): a(f"buffer_load_dwordx4 {vr(base+hh*32+b*4,4)}, v{240+b}, s[24:27], s67 offen")
            a(f"s_movk_i32 s67, {h*2048}")
            for q in range(2): a(f"buffer_load_dwordx4 {vr(base+hh*32+16+q*4,4)}, v244, s[24:27], s67 offen offset:{q*16}")
    sload(0); sload(1)
    OB = 208
    for p in range(4):
        base = LB + (p % 2) * 64
        a(f"s_waitcnt vmcnt({12 if p < 3 else 0})")
        for hh in range(2):
            for q in range(2): a(f"ds_read_b128 {vr(base+hh*32+24+q*4,4)}, v245 offset:{(2*p+hh)*128+q*16}")
        a("s_waitcnt lgkmcnt(0)")
        if p == 0: stamp(a, 4)
        if p == 2: stamp(a, 5)
        for hh in range(2):
            hb = base + hh * 32
            for i in range(4): a(f"v_cvt_pk_bf16_f32 v{224+hh*8+i}, v{hb+16+2*i}, v{hb+17+2*i}")
            for i in range(4): a(f"v_cvt_pk_bf16_f32 v{228+hh*8+i}, v{hb+24+2*i}, v{hb+25+2*i}")
        a.nop(2)
        NT, DT = base + 16, base + 48
        for hh in range(2):
            hb = base + hh * 32
            for b in range(4):
                a(f"v_mfma_f32_16x16x32_bf16 {vr(NT+b*4,4)}, {vr(224+hh*8,4)}, {vr(hb+b*4,4)}, 0")
                a(f"v_mfma_f32_16x16x32_bf16 {vr(DT+b*4,4)}, {vr(228+hh*8,4)}, {vr(hb+b*4,4)}, 0")
            a.nop(8)
            for b in range(4): a(f"v_cvt_pk_bf16_f32 v{DT+b*4}, v{DT+b*4}, v{DT+b*4}")
            for b in range(4): a(f"v_cvt_pk_bf16_f32 v{DT+b*4+1}, v{NT+b*4}, v{NT+b*4+1}"); a(f"v_cvt_pk_bf16_f32 v{DT+b*4+2}, v{NT+b*4+2}, v{NT+b*4+3}")
            for b in range(4): a(f"v_lshlrev_b32 v{DT+b*4}, 16, v{DT+b*4}")
            for b in range(4): a(f"v_add_f32 v{DT+b*4}, 0x358637bd, v{DT+b*4}")
            for b in range(4): a(f"v_cvt_pk_bf16_f32 v{DT+b*4}, v{DT+b*4}, v{DT+b*4}")
            for b in range(4): a(f"v_lshlrev_b32 v{DT+b*4}, 16, v{DT+b*4}")
            for b in range(4): a(f"v_rcp_f32 v{DT+b*4}, v{DT+b*4}")
            for b in range(4):
                a(f"v_lshlrev_b32 v{NT+b*4}, 16, v{DT+b*4+1}"); a(f"v_and_b32 v{NT+b*4+1}, 0xffff0000, v{DT+b*4+1}")
                a(f"v_lshlrev_b32 v{NT+b*4+2}, 16, v{DT+b*4+2}"); a(f"v_and_b32 v{NT+b*4+3}, 0xffff0000, v{DT+b*4+2}")
            for b in range(4):
                for i in range(4): a(f"v_mul_f32 v{NT+b*4+i}, v{NT+b*4+i}, v{DT+b*4}")
            for b in range(4):
                a(f"v_cvt_pk_bf16_f32 v{OB+b*4+hh*2}, v{NT+b*4}, v{NT+b*4+1}"); a(f"v_cvt_pk_bf16_f32 v{OB+b*4+hh*2+1}, v{NT+b*4+2}, v{NT+b*4+3}")
        if p + 2 < 4: sload(p + 2)
        for u in range(4):
            for j in range(2):
                a(f"ds_read_b64_tr_b16 {vr(BF2+u*4+2*j,2)}, v{4+u} offset:{p*4096+j*2048}")
        for u in range(4):
            a(f"s_waitcnt lgkmcnt({6-2*u})")
            for b in range(4):
                c = "0" if p == 0 else vr(acc(u, b), 4)
                a(f"v_mfma_f32_16x16x32_bf16 {vr(acc(u,b),4)}, {vr(BF2+u*4,4)}, {vr(OB+b*4,4)}, {c}")
    a.lab("k3_red")
    stamp(a, 1)
    a.nop(8)
    a("v_and_b32 v8, 15, v2"); a("v_lshrrev_b32 v9, 4, v2"); a("v_and_b32 v10, 7, v2")
    a("v_lshlrev_b32 v8, 8, v8"); a("v_add_u32 v8, s64, v8")
    for u in range(4):
        a(f"v_add_u32 v11, {4*u}, v9"); a("v_xor_b32 v11, v11, v10"); a(f"v_lshl_add_u32 v{4+u}, v11, 4, v8")
    for u in range(4):
        for b in range(4):
            a(f"ds_write_b128 v{4+u}, {vr(acc(u,b),4)} offset:{b*4096}")
    a("s_waitcnt lgkmcnt(0)"); a("s_barrier")
    stamp(a, 2)
    a("v_lshrrev_b32 v8, 3, v0"); a("v_and_b32 v10, 7, v8"); a("v_lshlrev_b32 v8, 8, v8"); a("v_and_b32 v9, 7, v0"); a("v_lshlrev_b32 v9, 1, v9")
    a("v_xor_b32 v11, v9, v10"); a("v_lshl_add_u32 v4, v11, 4, v8")
    a("v_add_u32 v9, 1, v9"); a("v_xor_b32 v11, v9, v10"); a("v_lshl_add_u32 v5, v11, 4, v8")
    a("v_add_u32 v6, 65536, v4"); a("v_add_u32 v7, 65536, v5")
    for w in range(8):
        ww = w ^ 4
        for q in range(2):
            a(f"ds_read_b128 {vr(16+w*8+q*4,4)}, v{4+q+2*(ww>>2)} offset:{(ww&3)*16384}")
    a("s_waitcnt lgkmcnt(0)")
    for i in range(8):
        a(f"v_add_f32 v{16+i}, v{16+i}, v{24+i}"); a(f"v_add_f32 v{32+i}, v{32+i}, v{40+i}")
        a(f"v_add_f32 v{48+i}, v{48+i}, v{56+i}"); a(f"v_add_f32 v{64+i}, v{64+i}, v{72+i}")
    for i in range(8):
        a(f"v_add_f32 v{16+i}, v{16+i}, v{32+i}"); a(f"v_add_f32 v{48+i}, v{48+i}, v{64+i}")
    for i in range(0, 8, 2): rb_pair(a, 16 + i, 17 + i, 80); rb_pair(a, 48 + i, 49 + i, 80)
    for i in range(8): a(f"v_mul_f32 v{32+i}, s61, v{16+i}")
    for i in range(8): a(f"v_exp_f32 v{32+i}, -v{32+i}")
    a.nop(1)
    for i in range(8): a(f"v_add_f32 v{32+i}, 1.0, v{32+i}")
    for i in range(8): a(f"v_rcp_f32 v{32+i}, v{32+i}")
    a.nop(1)
    for i in range(8): a(f"v_mul_f32 v{32+i}, v{32+i}, v{16+i}")
    for i in range(0, 8, 2): rb_pair(a, 32 + i, 33 + i, 80)
    for i in range(8): a(f"v_mul_f32 v{32+i}, v{32+i}, v{48+i}")
    for i in range(0, 8, 2): rb_pair(a, 32 + i, 33 + i, 80)
    a("s_waitcnt vmcnt(0)")
    for i in range(4):
        a(f"v_lshlrev_b32 v{64+2*i}, 16, v{12+i}"); a(f"v_and_b32 v{65+2*i}, 0xffff0000, v{12+i}")
    for i in range(8): a(f"v_add_f32 v{32+i}, v{32+i}, v{64+i}")
    for i in range(4): a(f"v_cvt_pk_bf16_f32 v{12+i}, v{32+2*i}, v{33+2*i}")
    a("buffer_store_dwordx4 v[12:15], v3, s[32:35], 0 offen")
    if STAMP:
        stamp(a, 6); a("s_waitcnt vmcnt(0)"); stamp(a, 7); a("s_mov_b64 s[92:93], s[94:95]"); stamp_out(a, 24, 9, 1)
    a.lab("k3_end"); a("s_endpgm")
BF2 = 224
```

```python
import sys, re, os
NAME = "recurrent_scan__linear_kernel_hedgehog__glu_gated_swiglu__prompt"
MB = 1 << 20
XN_OFF, H_OFF, PHI_OFF, KV_OFF = 0, 2 * MB, 8 * MB, 12 * MB
Z_OFF = KV_OFF + 65536
WS_SIZE = 16 * MB
LOG2E = 0x3fb8aa3b
STAMP = bool(os.environ.get('STAMP'))
DPOS = int(os.environ.get('DPOS', '1')) or None
PFV = int(os.environ.get('PFV', '4'))
PREFETCH = int(os.environ.get('PREFETCH', '3'))

class Asm:
    def __init__(s): s.l = []
    def __call__(s, t):
        m = re.search(r"offset:(\d+)", t)
        if m and t.startswith("buffer_"): assert int(m.group(1)) <= 4095, t
        if m and t.startswith("ds_"): assert int(m.group(1)) <= 65535, t
        if re.match(r"buffer_store_dwordx[24] ", t): t += " sc1"
        s.l.append("    " + t)
    def lab(s, t): s.l.append(t + ":")
    def nop(s, n):
        while n > 0:
            k = min(n, 16); s(f"s_nop {k-1}"); n -= k
    def srd(s, d, lo, hi, size):
        s(f"s_mov_b32 s{d}, s{lo}"); s(f"s_and_b32 s{d+1}, s{hi}, 0xffff")
        s(f"s_mov_b32 s{d+2}, {size}"); s(f"s_mov_b32 s{d+3}, 0x00020000")
    def head(s, name):
        s.l += [".p2align 8", f".globl {name}", f".type {name},@function"]; s.lab(name)

def stamp(a, i):
    if STAMP: a(f"s_memtime s[{76+2*i}:{77+2*i}]")
def stamp_out(a, srd, n, tag):
    if not STAMP: return
    a(f"s_memrealtime s[{76+2*n}:{77+2*n}]")
    a("s_waitcnt lgkmcnt(0)")
    a("s_lshl_b32 s74, s2, 3"); a("s_add_u32 s74, s74, s14"); a("s_lshl_b32 s74, s74, 7"); a(f"s_add_u32 s74, s74, {14*MB + tag*(1<<19)}")
    a("v_mov_b32 v250, s74")
    for i in range(2 * (n + 1)):
        a(f"v_mov_b32 v251, s{76+i}"); a(f"buffer_store_dword v251, v250, s[{srd}:{srd+3}], 0 offen offset:{4*i}")
def vr(a, n): return f"v[{a}:{a+n-1}]"
def kdesc(name, vgpr, sgpr=100):
    return f""".p2align 6
.amdhsa_kernel {name}
  .amdhsa_next_free_vgpr {vgpr}
  .amdhsa_next_free_sgpr {sgpr}
  .amdhsa_accum_offset {(vgpr+3)//4*4}
  .amdhsa_group_segment_fixed_size 0
  .amdhsa_kernarg_size 88
  .amdhsa_user_sgpr_count 2
  .amdhsa_user_sgpr_kernarg_segment_ptr 1
  .amdhsa_system_sgpr_workgroup_id_x 1
.end_amdhsa_kernel
"""
def rb_pair(a, x0, x1, t):
    a(f"v_cvt_pk_bf16_f32 v{t}, v{x0}, v{x1}")
    a(f"v_lshlrev_b32 v{x0}, 16, v{t}"); a(f"v_and_b32 v{x1}, 0xffff0000, v{t}")

def gen_k0(a):
    a.head("k0_kernel")
    a("s_cmp_ge_u32 s2, 512"); a("s_cbranch_scc1 k0_end")
    a("s_load_dwordx2 s[4:5], s[0:1], 0"); a("s_load_dwordx2 s[6:7], s[0:1], 80")
    a("v_and_b32 v1, 15, v0"); a("v_lshrrev_b32 v2, 4, v0")
    a("s_lshl_b32 s3, s2, 12")
    a("v_lshlrev_b32 v3, 10, v2"); a("v_lshl_add_u32 v3, v1, 4, v3"); a("v_add_u32 v3, s3, v3")
    a("s_waitcnt lgkmcnt(0)")
    a.srd(8, 4, 5, 2 * MB); a.srd(12, 6, 7, WS_SIZE)
    for c in range(4): a(f"buffer_load_dwordx4 {vr(4+4*c,4)}, v3, s[8:11], 0 offen offset:{256*c}")
    npf = 0
    if PREFETCH:
        a("s_load_dwordx2 s[20:21], s[0:1], 8")
        a("s_load_dwordx2 s[22:23], s[0:1], 24")
        a("s_load_dwordx4 s[24:27], s[0:1], 40")
        a("s_load_dwordx2 s[28:29], s[0:1], 56")
        a("s_and_b32 s30, s2, 7"); a("s_lshr_b32 s31, s2, 3")
        a("v_lshrrev_b32 v70, 3, v0"); a("s_lshl_b32 s32, s31, 3"); a("v_add_u32 v70, s32, v70")
        a("v_and_b32 v71, 7, v0")
        a("s_waitcnt lgkmcnt(0)")
        a.srd(36, 20, 21, 512 * 1536 * 2); a.srd(40, 24, 25, 512 * 1376 * 2); a.srd(44, 26, 27, 512 * 1376 * 2)
        a("v_lshrrev_b32 v72, 1, v71"); a("v_cmp_eq_u32 vcc, 3, v72"); a.nop(2); a("v_cndmask_b32 v72, v72, 0, vcc")
        a("v_lshlrev_b32 v72, 10, v72"); a("v_and_b32 v73, 1, v71"); a("v_lshl_add_u32 v72, v73, 6, v72")
        a("v_mul_u32_u24 v73, 3072, v70"); a("v_add_u32 v72, v72, v73")
        a("s_lshl_b32 s33, s30, 7")
        a("buffer_load_dword v128, v72, s[36:39], s33 offen")
        a("v_mul_u32_u24 v72, 48, v71"); a("v_mul_u32_u24 v73, 2752, v70"); a("v_add_u32 v72, v72, v73")
        a("s_mul_i32 s33, s30, 352")
        a("buffer_load_dword v129, v72, s[40:43], s33 offen"); a("buffer_load_dword v130, v72, s[44:47], s33 offen")
        npf = 3
        if PREFETCH == 2:
            a.srd(36, 28, 29, 1376 * 1024); a.srd(40, 22, 23, 512 * 1024)
            a("v_lshlrev_b32 v72, 7, v0"); a("s_mul_i32 s44, s31, 24576")
            for i in range(3):
                a(f"s_add_u32 s45, s44, {i*8192}"); a(f"buffer_load_dword v{132+i}, v72, s[36:39], s45 offen")
            a("s_lshl_b32 s44, s31, 13"); a("buffer_load_dword v135, v72, s[40:43], s44 offen")
            npf = 7
    a("s_cmp_ge_u32 s2, 68"); a("s_cbranch_scc1 k0_nz")
    for i in range(4): a(f"v_mov_b32 v{20+i}, 0")
    a("s_lshl_b32 s16, s2, 10"); a(f"s_add_u32 s16, s16, {KV_OFF}")
    a("v_lshlrev_b32 v24, 4, v0"); a("v_add_u32 v24, s16, v24")
    a("buffer_store_dwordx4 v[20:23], v24, s[12:15], 0 offen")
    a.lab("k0_nz")
    a(f"s_waitcnt vmcnt({npf})")
    for i in range(16):
        a(f"v_lshlrev_b32 v{32+2*i}, 16, v{4+i}"); a(f"v_and_b32 v{33+2*i}, 0xffff0000, v{4+i}")
    for i in range(16): a(f"v_add_f32 v{64+i}, v{32+2*i}, v{33+2*i}")
    n = 16
    while n > 1:
        for i in range(n // 2): a(f"v_add_f32 v{64+i}, v{64+i}, v{64+i+n//2}")
        n //= 2
    def red16(r):
        for sh in (8, 4, 2, 1):
            a.nop(2); a(f"v_add_f32_dpp v{r}, v{r}, v{r} row_ror:{sh} row_mask:0xf bank_mask:0xf")
    red16(64)
    a("v_mul_f32 v64, 0x3b000000, v64")
    a("v_cvt_pk_bf16_f32 v65, v64, v64"); a("v_lshlrev_b32 v65, 16, v65")
    for i in range(32): a(f"v_sub_f32 v{80+i}, v{32+i}, v64")
    for i in range(16): a(f"v_mul_f32 v{112+i}, v{80+2*i}, v{80+2*i}")
    for i in range(16): a(f"v_fmac_f32 v{112+i}, v{81+2*i}, v{81+2*i}")
    n = 16
    while n > 1:
        for i in range(n // 2): a(f"v_add_f32 v{112+i}, v{112+i}, v{112+i+n//2}")
        n //= 2
    red16(112)
    a("v_mul_f32 v66, 0x3b000000, v112")
    a("v_cvt_pk_bf16_f32 v66, v66, v66"); a("v_lshlrev_b32 v66, 16, v66")
    a("v_add_f32 v66, 0x3727c5ac, v66")
    a("v_cvt_pk_bf16_f32 v66, v66, v66"); a("v_lshlrev_b32 v66, 16, v66")
    a("v_sqrt_f32 v66, v66"); a.nop(1)
    a("v_cvt_pk_bf16_f32 v66, v66, v66"); a("v_lshlrev_b32 v66, 16, v66")
    a("v_rcp_f32 v66, v66"); a.nop(1)
    for i in range(32): a(f"v_sub_f32 v{80+i}, v{32+i}, v65")
    for i in range(16): a(f"v_cvt_pk_bf16_f32 v{112+i}, v{80+2*i}, v{81+2*i}")
    for i in range(16):
        a(f"v_lshlrev_b32 v{80+2*i}, 16, v{112+i}"); a(f"v_and_b32 v{81+2*i}, 0xffff0000, v{112+i}")
    for i in range(32): a(f"v_mul_f32 v{80+i}, v{80+i}, v66")
    for i in range(16): a(f"v_cvt_pk_bf16_f32 v{4+i}, v{80+2*i}, v{81+2*i}")
    a("s_lshr_b32 s16, s2, 2"); a("s_lshl_b32 s16, s16, 14"); a("s_and_b32 s17, s2, 3"); a("s_lshl_b32 s17, s17, 6"); a("s_add_u32 s16, s16, s17")
    a("v_lshrrev_b32 v20, 2, v1"); a("v_lshlrev_b32 v20, 10, v20"); a("v_and_b32 v21, 3, v1"); a("v_lshl_add_u32 v20, v21, 8, v20")
    a("v_lshl_add_u32 v20, v2, 4, v20"); a("v_add_u32 v20, s16, v20")
    for c in range(4):
        a(f"s_movk_i32 s17, {4096*c}")
        a(f"buffer_store_dwordx4 {vr(4+4*c,4)}, v20, s[12:15], s17 offen")
    a.lab("k0_end"); a("s_endpgm")

AOFF = 22528
STG = AOFF + 8192 + 1024
NSLOT = 5
WPHI_LDS = STG * NSLOT
K1_LDS = WPHI_LDS + 2048
SCR_LDS = AOFF + 8192
NST = 16
BR = 32
AR = 48
ACC = 160
SL, S1 = 62, 64

class LQ:
    def __init__(s, a): s.a = a; s.q = []
    def issue(s, tag, text): s.a(text); s.q.append(tag)
    def need(s, tags):
        idx = max((i for i, t in enumerate(s.q) if t in tags), default=-1)
        if idx < 0: return
        k = len(s.q) - 1 - idx
        s.a(f"s_waitcnt lgkmcnt({min(k,15)})")
        s.q = s.q[idx + 1:] if k <= 15 else s.q[len(s.q) - 15:]

def k1_dma(a, stage, nd, only=None):
    sl = stage % NSLOT
    for i in range(nd):
        if only is not None and i != only: continue
        a(f"s_add_u32 m0, s{52+i}, {sl*STG}")
        a(f"s_mul_i32 s60, s{56+i}, {stage}")
        a(f"buffer_load_dwordx4 v{20+i}, s[{36+4*i}:{39+4*i}], s60 offen lds")

def k1_main(a, units, RS, nd, dpos=None):
    lq = LQ(a)
    n = len(units)
    seq = [(st, i) for st in range(NST) for i in range(n)]
    def rd(k):
        st, i = seq[k]
        sl = st % NSLOT
        if i == 0:
            for b in range(2):
                lq.issue(('A', st, b), f"ds_read_b128 {vr(AR+((st&1)*2+b)*4,4)}, v{27+sl//2} offset:{(sl%2)*STG+b*1024}")
        off = units[i][0]; br = BR + (k % 4) * 4
        base = 16 + sl // 2; o2 = (sl % 2) * STG
        lq.issue(('B', k), f"ds_read_b64_tr_b16 {vr(br,2)}, v{base} offset:{o2+off}")
        lq.issue(('B', k), f"ds_read_b64_tr_b16 {vr(br+2,2)}, v{base} offset:{o2+off+16*RS}")
    for st in range(1, 4): k1_dma(a, st, nd)
    stamp(a, 5)
    a(f"s_waitcnt vmcnt({2*nd})"); a("s_barrier")
    stamp(a, 1)
    for k in range(3): rd(k)
    for k, (st, i) in enumerate(seq):
        if i == 0:
            if st > 0:
                rem = max(0, min(st + 3, NST - 1) - (st + 1))
                a(f"s_waitcnt vmcnt({rem*nd})"); a("s_barrier")
            if st == 8: stamp(a, 2)
            if st + 4 < NST and dpos is None: k1_dma(a, st + 4, nd)
        if k + 3 < len(seq): rd(k + 3)
        lq.need({('B', k), ('A', st, 0), ('A', st, 1)})
        off, ac, tr = units[i]; br = BR + (k % 4) * 4
        for b in range(2):
            ar = AR + ((st & 1) * 2 + b) * 4; d = ac + b * 4
            c = "0" if st == 0 else vr(d, 4)
            if tr: a(f"v_mfma_f32_16x16x32_bf16 {vr(d,4)}, {vr(br,4)}, {vr(ar,4)}, {c}")
            else: a(f"v_mfma_f32_16x16x32_bf16 {vr(d,4)}, {vr(ar,4)}, {vr(br,4)}, {c}")
        if dpos is not None and st + 4 < NST and i in dpos: k1_dma(a, st + 4, nd, only=dpos.index(i))

def phi_multi(a, blocks, ones):
    n = len(blocks)
    B = [dict(ac=ac, wp=wp, t0=T, p=T+2, e=T+6, f=T+10, mx=T+14, nm=T+15, c=T+16, d=T+17, s=T+18, op=op, om=om) for ac, wp, T, op, om in blocks]
    def each(fn):
        for b in B: fn(b)
    each(lambda b: (a(f"v_cvt_pk_bf16_f32 v{b['t0']}, v{b['ac']}, v{b['ac']+1}"), a(f"v_cvt_pk_bf16_f32 v{b['t0']+1}, v{b['ac']+2}, v{b['ac']+3}")))
    a.nop(1)
    each(lambda b: a(f"v_mfma_f32_16x16x16_bf16 {vr(b['p'],4)}, {vr(b['wp'],2)}, {vr(b['t0'],2)}, 0"))
    a.nop(8)
    each(lambda b: (a(f"v_cvt_pk_bf16_f32 v{b['t0']}, v{b['p']}, v{b['p']+1}"), a(f"v_cvt_pk_bf16_f32 v{b['t0']+1}, v{b['p']+2}, v{b['p']+3}")))
    each(lambda b: (a(f"v_lshlrev_b32 v{b['p']}, 16, v{b['t0']}"), a(f"v_and_b32 v{b['p']+1}, 0xffff0000, v{b['t0']}"),
                    a(f"v_lshlrev_b32 v{b['p']+2}, 16, v{b['t0']+1}"), a(f"v_and_b32 v{b['p']+3}, 0xffff0000, v{b['t0']+1}")))
    each(lambda b: (a(f"v_max3_f32 v{b['mx']}, v{b['p']}, v{b['p']+1}, v{b['p']+2}"), a(f"v_max3_f32 v{b['nm']}, -v{b['p']}, -v{b['p']+1}, -v{b['p']+2}")))
    each(lambda b: (a(f"v_max_f32 v{b['mx']}, v{b['mx']}, v{b['p']+3}"), a(f"v_max_f32_e64 v{b['nm']}, v{b['nm']}, -v{b['p']+3}")))
    pad = max(0, 2 - (n - 1))
    a.nop(1 if n > 1 else 2)
    each(lambda b: a(f"v_permlane32_swap_b32 v{b['mx']}, v{b['nm']}"))
    each(lambda b: a(f"v_max_f32 v{b['c']}, v{b['mx']}, v{b['nm']}"))
    each(lambda b: a(f"v_mov_b32 v{b['d']}, v{b['c']}"))
    a.nop(pad)
    each(lambda b: a(f"v_permlane16_swap_b32 v{b['c']}, v{b['d']}"))
    each(lambda b: a(f"v_max_f32 v{b['mx']}, v{b['c']}, v{b['d']}"))
    each(lambda b: a(f"v_mov_b32 v{b['nm']}, v{b['mx']}"))
    a.nop(pad)
    each(lambda b: a(f"v_permlane32_swap_b32 v{b['mx']}, v{b['nm']}"))
    each(lambda b: a(f"v_pk_mul_f32 {vr(b['mx'],2)}, {vr(b['mx'],2)}, s[{SL}:{SL+1}]"))
    for i in (0, 2):
        each(lambda b: a(f"v_pk_fma_f32 {vr(b['e']+i,2)}, {vr(b['p']+i,2)}, s[{SL}:{SL+1}], {vr(b['mx'],2)} op_sel_hi:[1,1,0] neg_lo:[0,0,1] neg_hi:[0,0,1]"))
        each(lambda b: a(f"v_pk_fma_f32 {vr(b['f']+i,2)}, {vr(b['p']+i,2)}, s[{SL}:{SL+1}], {vr(b['mx'],2)} op_sel:[0,0,1] op_sel_hi:[1,1,1] neg_lo:[1,0,1] neg_hi:[1,0,1]"))
    for i in range(4):
        each(lambda b: (a(f"v_exp_f32 v{b['e']+i}, v{b['e']+i}"), a(f"v_exp_f32 v{b['f']+i}, v{b['f']+i}")))
    a.nop(1)
    each(lambda b: (a(f"v_pk_add_f32 {vr(b['mx'],2)}, {vr(b['e'],2)}, {vr(b['e']+2,2)}"), a(f"v_pk_add_f32 {vr(b['c'],2)}, {vr(b['f'],2)}, {vr(b['f']+2,2)}")))
    each(lambda b: (a(f"v_add_f32 v{b['mx']}, v{b['mx']}, v{b['nm']}"), a(f"v_add_f32 v{b['c']}, v{b['c']}, v{b['d']}")))
    a.nop(1)
    each(lambda b: (a(f"v_mfma_f32_16x16x4_f32 {vr(b['p'],4)}, v{ones}, v{b['mx']}, 0"), a(f"v_mfma_f32_16x16x4_f32 {vr(b['s'],4)}, v{ones}, v{b['c']}, 0")))
    a.nop(10)
    each(lambda b: (a(f"v_rcp_f32 v{b['mx']}, v{b['p']}"), a(f"v_rcp_f32 v{b['c']}, v{b['s']}")))
    a.nop(1)
    for i in (0, 2):
        each(lambda b: (a(f"v_pk_mul_f32 {vr(b['e']+i,2)}, {vr(b['e']+i,2)}, {vr(b['mx'],2)} op_sel_hi:[1,0]"),
                        a(f"v_pk_mul_f32 {vr(b['f']+i,2)}, {vr(b['f']+i,2)}, {vr(b['c'],2)} op_sel_hi:[1,0]")))
    each(lambda b: (a(f"v_cvt_pk_bf16_f32 v{b['op']}, v{b['e']}, v{b['e']+1}"), a(f"v_cvt_pk_bf16_f32 v{b['op']+1}, v{b['e']+2}, v{b['e']+3}"),
                    a(f"v_cvt_pk_bf16_f32 v{b['om']}, v{b['f']}, v{b['f']+1}"), a(f"v_cvt_pk_bf16_f32 v{b['om']+1}, v{b['f']+2}, v{b['f']+3}")))

def divmod_lane(a, dst_q, dst_r, src, d):
    magic = (1 << 24) // d + 1
    for o in range(0, 14336, 16): assert (o * magic) >> 24 == o // d, (d, o)
    a(f"v_mul_u32_u24 v{dst_q}, {magic}, v{src}"); a(f"v_lshrrev_b32 v{dst_q}, 24, v{dst_q}")
    a(f"v_mul_u32_u24 v{dst_r}, {d}, v{dst_q}"); a(f"v_sub_u32 v{dst_r}, v{src}, v{dst_r}")

def kmap(a, dst, sr, t):
    a(f"v_bfe_u32 v{dst}, v{sr}, 2, 2"); a(f"v_lshlrev_b32 v{dst}, 3, v{dst}")
    a(f"v_lshrrev_b32 v{t}, 4, v{sr}"); a(f"v_lshl_add_u32 v{dst}, v{t}, 2, v{dst}")
    a(f"v_and_b32 v{t}, 3, v{sr}"); a(f"v_add_u32 v{dst}, v{dst}, v{t}")

def k3pf(a, reg, tag):
    if PREFETCH < 3: return
    a("s_cmp_ge_u32 s14, 6"); a(f"s_cbranch_scc1 k1_pfo{tag}")
    a.srd(36, 98, 99, 1376 * 1024); a("s_mul_i32 s71, s15, 6"); a("s_add_u32 s71, s71, s14")
    a(f"s_branch k1_pfd{tag}")
    a.lab(f"k1_pfo{tag}")
    a.srd(36, 96, 97, 512 * 1024); a("s_lshl_b32 s71, s15, 1"); a("s_add_u32 s71, s71, s14"); a("s_sub_u32 s71, s71, 6")
    a.lab(f"k1_pfd{tag}")
    a("s_lshl_b32 s71, s71, 13"); a(f"v_lshlrev_b32 v{reg}, 7, v2")
    a(f"buffer_load_dword v{reg+1}, v{reg}, s[36:39], s71 offen")

def gen_k1(a):
    a.head("k1_kernel")
    a("s_cmp_ge_u32 s2, 256"); a("s_cbranch_scc1 k1_end")
    stamp(a, 0)
    if STAMP: a("s_memrealtime s[94:95]")
    a("s_load_dwordx4 s[4:7], s[0:1], 8")
    a("s_load_dwordx4 s[8:11], s[0:1], 40")
    a("s_load_dwordx2 s[12:13], s[0:1], 80")
    a("s_load_dwordx2 s[96:97], s[0:1], 24")
    a("s_load_dwordx2 s[98:99], s[0:1], 56")
    a("v_lshrrev_b32 v1, 6, v0"); a("v_and_b32 v2, 63, v0"); a.nop(1)
    a("v_readfirstlane_b32 s14, v1")
    a("s_and_b32 s66, s2, 7"); a("s_lshr_b32 s15, s2, 3")
    a("s_and_b32 s67, s15, 1")
    a("s_lshr_b32 s68, s15, 1")
    a("s_and_b32 s69, s14, 3")
    a("s_lshr_b32 s70, s14, 2")
    a(f"s_mov_b32 s{SL}, {LOG2E:#x}"); a(f"s_mov_b32 s{SL+1}, {LOG2E:#x}"); a(f"s_mov_b32 s{S1}, 1.0"); a(f"s_mov_b32 s{S1+1}, 1.0")
    a("s_lshl_b32 s71, s68, 7"); a("s_lshl_b32 s72, s69, 5"); a("s_add_u32 s73, s71, s72")
    a("v_lshlrev_b32 v3, 4, v2")
    a("s_waitcnt lgkmcnt(0)")
    stamp(a, 4)
    a.srd(24, 12, 13, WS_SIZE)
    a.srd(16, 4, 5, 512 * 1536 * 2)
    a.srd(28, 8, 9, 512 * 1376 * 2); a.srd(32, 10, 11, 512 * 1376 * 2)
    a("s_lshl_b32 s71, s69, 11"); a(f"s_add_u32 s71, s71, {AOFF}"); a("v_add_u32 v27, s71, v3")
    a(f"v_add_u32 v28, {2*STG}, v27"); a(f"v_add_u32 v29, {4*STG}, v27")
    a("s_cmp_eq_u32 s67, 1"); a("s_cbranch_scc1 k1_gu")
    a.srd(20, 6, 7, 16384)
    a("s_cmp_ge_u32 s14, 2"); a("s_cbranch_scc1 k1_q_nophi")
    a("s_lshl_b32 s71, s66, 11"); a("s_lshl_b32 s72, s14, 10"); a("s_add_u32 s71, s71, s72")
    a(f"s_add_u32 m0, s72, {WPHI_LDS}"); a.nop(1)
    a("buffer_load_dwordx4 v3, s[20:23], s71 offen lds")
    a.lab("k1_q_nophi")
    for i in range(3):
        a("s_mul_i32 s71, s14, 3"); a(f"s_add_u32 s71, s71, {i}")
        a("s_cmp_lt_u32 s71, 13"); a(f"s_cbranch_scc0 k1_qa{i}")
        for w in range(4): a(f"s_mov_b32 s{36+4*i+w}, s{16+w}")
        a(f"s_lshl_b32 s{52+i}, s71, 10"); a(f"s_mov_b32 s{56+i}, {32*3072}")
        a(f"v_add_u32 v4, s{52+i}, v3")
        divmod_lane(a, 5, 6, 4, 416); kmap(a, 7, 5, 8)
        a("v_mul_u32_u24 v7, 3072, v7")
        a("v_lshrrev_b32 v8, 7, v6"); a("v_cmp_eq_u32 vcc, 3, v8"); a.nop(2); a("v_cndmask_b32 v8, v8, 0, vcc")
        a("v_lshl_add_u32 v7, v8, 10, v7"); a("v_and_b32 v6, 127, v6"); a("v_add_u32 v7, v7, v6")
        a("s_lshl_b32 s72, s66, 7"); a(f"v_add_u32 v{20+i}, s72, v7")
        a(f"s_branch k1_qb{i}")
        a.lab(f"k1_qa{i}")
        for w in range(4): a(f"s_mov_b32 s{36+4*i+w}, s{24+w}")
        a("s_sub_u32 s71, s71, 13")
        a(f"s_lshl_b32 s{52+i}, s71, 10"); a(f"s_add_u32 s{52+i}, s{52+i}, {AOFF}"); a(f"s_movk_i32 s{56+i}, 1024")
        a("s_lshl_b32 s72, s68, 3"); a("s_add_u32 s72, s72, s71"); a("s_lshl_b32 s72, s72, 14")
        a("s_cmp_lt_u32 s71, 8"); a("s_cselect_b32 s72, s72, 0x40000000"); a(f"v_add_u32 v{20+i}, s72, v3")
        a(f"s_cselect_b32 s{61 if False else 52+i}, s{52+i}, {SCR_LDS}"); a(f"s_cselect_b32 s{75 if False else 56+i}, s{56+i}, 0")
        a.lab(f"k1_qb{i}")
        k1_dma(a, 0, 3, only=i)
    a("v_lshrrev_b32 v4, 2, v2"); a("v_mul_u32_u24 v4, 416, v4"); a("v_and_b32 v5, 3, v2"); a("v_lshl_add_u32 v4, v5, 3, v4")
    a("s_lshl_b32 s71, s70, 6"); a("v_add_u32 v16, s71, v4"); a(f"v_add_u32 v17, {2*STG}, v16"); a(f"v_add_u32 v18, {4*STG}, v16")
    def qacc(part, hh): return ACC + (part * 2 + hh) * 8
    units = [(part * 128 + hh * 32, qacc(part, hh), part != 2) for part in range(3) for hh in range(2)]
    k1_main(a, units, 416, 3, DPOS and (0, 2, 4))
    stamp(a, 3)
    if PFV in (0, 2): k3pf(a, 240, "q")
    a.nop(8); a("s_barrier")
    a(f"v_lshlrev_b32 v3, 3, v2"); a(f"v_add_u32 v3, {WPHI_LDS}, v3"); a("s_lshl_b32 s71, s70, 10"); a("v_add_u32 v3, s71, v3")
    for hh in range(2): a(f"ds_read_b64_tr_b16 {vr(32+hh*2,2)}, v3 offset:{hh*512}")
    a("v_mov_b32 v10, 1.0")
    a("v_lshlrev_b32 v4, 4, v2")
    a("s_lshl_b32 s71, s66, 12"); a("s_lshl_b32 s72, s70, 11"); a("s_add_u32 s71, s71, s72")
    a("s_lshl_b32 s72, s73, 11"); a("s_add_u32 s71, s71, s72")
    a(f"s_add_u32 s71, s71, {PHI_OFF}"); a("v_add_u32 v4, s71, v4"); a("v_add_u32 v5, 0x8000, v4")
    a("s_waitcnt lgkmcnt(0)")
    def blocks(part):
        ob = 48 if part == 0 else 208
        return [(qacc(part, hh) + b * 4, 32 + hh * 2, 64 + (hh * 2 + b) * 24, ob + (hh * 2 + b) * 4, ob + 2 + (hh * 2 + b) * 4) for hh in range(2) for b in range(2)]
    phi_multi(a, blocks(0), 10)
    for hh in range(2):
        for b in range(2): a(f"buffer_store_dwordx4 {vr(48+(hh*2+b)*4,4)}, v{4+b}, s[24:27], 0 offen offset:{hh*1024}")
    a("v_and_b32 v6, 15, v2"); a("v_lshrrev_b32 v7, 4, v2"); a("v_lshlrev_b32 v11, 2, v7"); a("v_sub_u32 v6, v6, v11")
    a("v_mov_b32 v12, 0x3f80"); a("v_mov_b32 v13, 0x3f800000"); a("v_mov_b32 v8, 0"); a("v_mov_b32 v9, 0")
    a("v_cmp_eq_u32 vcc, 0, v6"); a.nop(2); a("v_cndmask_b32 v8, v8, v12, vcc")
    a("v_cmp_eq_u32 vcc, 1, v6"); a.nop(2); a("v_cndmask_b32 v8, v8, v13, vcc")
    a("v_cmp_eq_u32 vcc, 2, v6"); a.nop(2); a("v_cndmask_b32 v9, v9, v12, vcc")
    a("v_cmp_eq_u32 vcc, 3, v6"); a.nop(2); a("v_cndmask_b32 v9, v9, v13, vcc")
    for i in range(4): a(f"v_mov_b32 v{12+i}, 0x3f803f80")
    a("v_and_b32 v6, 15, v2"); a("v_lshlrev_b32 v6, 7, v6"); a("v_lshl_add_u32 v6, v7, 5, v6")
    a("s_mul_i32 s71, s69, 8704"); a("s_lshl_b32 s72, s70, 12"); a("s_add_u32 s72, s72, s71"); a("v_add_u32 v6, s72, v6")
    a("s_lshl_b32 s72, s70, 8"); a("s_add_u32 s72, s72, s71"); a("s_add_u32 s72, s72, 8192")
    a("v_lshlrev_b32 v7, 5, v7"); a("v_add_u32 v7, s72, v7")
    phi_multi(a, blocks(1), 10)
    a.nop(1)
    for k in range(4):
        for sg in range(2): a(f"v_mfma_f32_16x16x16_bf16 {vr(64+(k*2+sg)*4,4)}, {vr(208+k*4+sg*2,2)}, v[8:9], 0")
    for hh in range(2):
        for b in range(2):
            va = qacc(2, hh) + b * 4
            a(f"v_cvt_pk_bf16_f32 v{112+hh*4+2*b}, v{va}, v{va+1}"); a(f"v_cvt_pk_bf16_f32 v{113+hh*4+2*b}, v{va+2}, v{va+3}")
    a.nop(1)
    for hh in range(2):
        for b in range(2):
            for sg in range(2):
                t = 64 + ((hh * 2 + b) * 2 + sg) * 4; o = 96 + (hh * 2 + sg) * 4 + 2 * b
                a(f"v_cvt_pk_bf16_f32 v{o}, v{t}, v{t+1}"); a(f"v_cvt_pk_bf16_f32 v{o+1}, v{t+2}, v{t+3}")
    a.nop(2)
    for hh in range(2):
        for sg in range(2):
            a(f"v_mfma_f32_16x16x32_bf16 {vr(120+(hh*2+sg)*4,4)}, {vr(96+(hh*2+sg)*4,4)}, {vr(112+hh*4,4)}, 0")
            a(f"v_mfma_f32_16x16x32_bf16 {vr(136+(hh*2+sg)*4,4)}, {vr(96+(hh*2+sg)*4,4)}, v[12:15], 0")
    a.nop(8)
    for hh in range(2):
        for sg in range(2):
            a(f"ds_write_b128 v6, {vr(120+(hh*2+sg)*4,4)} offset:{hh*2048+sg*16}")
            a(f"ds_write_b128 v7, {vr(136+(hh*2+sg)*4,4)} offset:{hh*128+sg*16}")
    a("s_waitcnt lgkmcnt(0)"); a("s_barrier")
    a("v_lshlrev_b32 v3, 2, v0")
    a("s_lshl_b32 s71, s66, 13"); a(f"s_add_u32 s71, s71, {KV_OFF}"); a("v_add_u32 v4, s71, v3")
    for i in range(4):
        for w in range(4): a(f"ds_read_b32 v{16+i*4+w}, v3 offset:{w*8704+i*2048}")
    for w in range(4): a(f"ds_read_b32 v{32+w}, v3 offset:{w*8704+8192}")
    a("s_waitcnt lgkmcnt(0)")
    for i in range(5):
        a(f"v_add_f32 v{16+i*4}, v{16+i*4}, v{17+i*4}"); a(f"v_add_f32 v{18+i*4}, v{18+i*4}, v{19+i*4}")
    for i in range(5): a(f"v_add_f32 v{16+i*4}, v{16+i*4}, v{18+i*4}")
    a("s_movk_i32 s72, 4096")
    a("buffer_atomic_add_f32 v16, v4, s[24:27], 0 offen"); a("buffer_atomic_add_f32 v20, v4, s[24:27], 0 offen offset:2048")
    a("buffer_atomic_add_f32 v24, v4, s[24:27], s72 offen"); a("buffer_atomic_add_f32 v28, v4, s[24:27], s72 offen offset:2048")
    a("s_cmp_ge_u32 s14, 2"); a("s_cbranch_scc1 k1_end")
    a("s_lshl_b32 s71, s66, 9"); a(f"s_add_u32 s71, s71, {Z_OFF}"); a("v_add_u32 v4, s71, v3")
    a("buffer_atomic_add_f32 v32, v4, s[24:27], 0 offen")
    a("s_branch k1_end")
    a.lab("k1_gu")
    for i in range(4):
        a("s_lshl_b32 s71, s14, 2"); a(f"s_add_u32 s71, s71, {i}")
        a("s_cmp_lt_u32 s71, 22"); a(f"s_cbranch_scc0 k1_ga{i}")
        a("s_cmp_ge_u32 s71, 11")
        for w in range(4): a(f"s_cselect_b32 s{36+4*i+w}, s{32+w}, s{28+w}")
        a("s_cselect_b32 s72, 11, 0"); a(f"s_lshl_b32 s{52+i}, s71, 10"); a("s_sub_u32 s71, s71, s72"); a("s_lshl_b32 s71, s71, 10")
        a(f"s_mov_b32 s{56+i}, {32*2752}")
        a("v_add_u32 v4, s71, v3")
        divmod_lane(a, 5, 6, 4, 352); kmap(a, 7, 5, 8)
        a("v_mul_u32_u24 v7, 2752, v7"); a("v_add_u32 v7, v7, v6")
        a("s_mul_i32 s72, s66, 352"); a(f"v_add_u32 v{20+i}, s72, v7")
        a(f"s_branch k1_gb{i}")
        a.lab(f"k1_ga{i}")
        for w in range(4): a(f"s_mov_b32 s{36+4*i+w}, s{24+w}")
        a("s_sub_u32 s71, s71, 22")
        a(f"s_lshl_b32 s{52+i}, s71, 10"); a(f"s_add_u32 s{52+i}, s{52+i}, {AOFF}"); a(f"s_movk_i32 s{56+i}, 1024")
        a("s_lshl_b32 s72, s68, 3"); a("s_add_u32 s72, s72, s71"); a("s_lshl_b32 s72, s72, 14")
        a("s_cmp_lt_u32 s71, 8"); a("s_cselect_b32 s72, s72, 0x40000000"); a(f"v_add_u32 v{20+i}, s72, v3")
        a(f"s_cselect_b32 s{61 if False else 52+i}, s{52+i}, {SCR_LDS}"); a(f"s_cselect_b32 s{75 if False else 56+i}, s{56+i}, 0")
        a.lab(f"k1_gb{i}")
        k1_dma(a, 0, 4, only=i)
    a("v_lshrrev_b32 v4, 2, v2"); a("v_mul_u32_u24 v4, 352, v4"); a("v_and_b32 v5, 3, v2"); a("v_lshl_add_u32 v4, v5, 3, v4")
    a("s_mul_i32 s71, s70, 192"); a("v_add_u32 v16, s71, v4"); a(f"v_add_u32 v17, {2*STG}, v16"); a(f"v_add_u32 v18, {4*STG}, v16")
    def gacc(R, p): return ACC + (p * 2 + R) * 8
    def gunits(NP): return [(R * 11264 + p * 32, gacc(R, p), True) for p in range(NP) for R in range(2)]
    a("s_cmp_eq_u32 s70, 1"); a("s_cbranch_scc1 k1_gu1")
    k1_main(a, gunits(6), 352, 4, DPOS and (0, 3, 6, 9)); a("s_branch k1_gu_epi")
    a.lab("k1_gu1"); k1_main(a, gunits(5), 352, 4, DPOS and (1, 4, 6, 8))
    a.lab("k1_gu_epi"); stamp(a, 3)
    if PFV in (0, 1, 5): k3pf(a, 64, "g")
    a.nop(8)
    a("v_and_b32 v4, 15, v2"); a("v_lshlrev_b32 v4, 4, v4")
    a("v_lshrrev_b32 v5, 5, v2"); a("v_lshl_add_u32 v4, v5, 8, v4"); a("v_bfe_u32 v5, v2, 4, 1"); a("v_mul_u32_u24 v5, 44032, v5"); a("v_add_u32 v4, v4, v5")
    a("s_mul_i32 s71, s66, 11"); a("s_mul_i32 s72, s70, 6"); a("s_add_u32 s71, s71, s72")
    a("s_lshr_b32 s72, s73, 4"); a("s_mul_i32 s72, s72, 44032"); a("s_lshl_b32 s74, s71, 9"); a("s_add_u32 s72, s72, s74")
    a(f"s_add_u32 s72, s72, {H_OFF}"); a("v_add_u32 v4, s72, v4")
    for p in range(6):
        if p == 5: a("s_cmp_eq_u32 s70, 1"); a("s_cbranch_scc1 k1_end")
        a(f"s_add_u32 s72, s71, {p}"); a("s_cmp_ge_u32 s72, 86"); a("s_cbranch_scc1 k1_end")
        G = [gacc(0, p) + b * 4 for b in range(2)]; U = [gacc(1, p) + b * 4 for b in range(2)]; T = [48 + b * 8 for b in range(2)]
        for b in range(2):
            a(f"v_cvt_pk_bf16_f32 v{T[b]}, v{G[b]}, v{G[b]+1}"); a(f"v_cvt_pk_bf16_f32 v{T[b]+1}, v{G[b]+2}, v{G[b]+3}")
            a(f"v_cvt_pk_bf16_f32 v{T[b]+2}, v{U[b]}, v{U[b]+1}"); a(f"v_cvt_pk_bf16_f32 v{T[b]+3}, v{U[b]+2}, v{U[b]+3}")
        for b in range(2):
            for i in range(2):
                a(f"v_lshlrev_b32 v{G[b]+2*i}, 16, v{T[b]+i}"); a(f"v_and_b32 v{G[b]+2*i+1}, 0xffff0000, v{T[b]+i}")
                a(f"v_lshlrev_b32 v{U[b]+2*i}, 16, v{T[b]+2+i}"); a(f"v_and_b32 v{U[b]+2*i+1}, 0xffff0000, v{T[b]+2+i}")
        for b in range(2):
            for i in (0, 2): a(f"v_pk_mul_f32 {vr(T[b]+i,2)}, {vr(G[b]+i,2)}, s[{SL}:{SL+1}]")
        for b in range(2):
            for i in range(4): a(f"v_exp_f32 v{T[b]+i}, -v{T[b]+i}")
        a.nop(1)
        for b in range(2):
            for i in (0, 2): a(f"v_pk_add_f32 {vr(T[b]+i,2)}, {vr(T[b]+i,2)}, s[{S1}:{S1+1}]")
        for b in range(2):
            for i in range(4): a(f"v_rcp_f32 v{T[b]+i}, v{T[b]+i}")
        a.nop(1)
        for b in range(2):
            for i in (0, 2): a(f"v_pk_mul_f32 {vr(T[b]+i,2)}, {vr(T[b]+i,2)}, {vr(G[b]+i,2)}")
        for b in range(2):
            a(f"v_cvt_pk_bf16_f32 v{T[b]+4}, v{T[b]}, v{T[b]+1}"); a(f"v_cvt_pk_bf16_f32 v{T[b]+5}, v{T[b]+2}, v{T[b]+3}")
        for b in range(2):
            for i in range(2):
                a(f"v_lshlrev_b32 v{T[b]+2*i}, 16, v{T[b]+4+i}"); a(f"v_and_b32 v{T[b]+2*i+1}, 0xffff0000, v{T[b]+4+i}")
        for b in range(2):
            for i in (0, 2): a(f"v_pk_mul_f32 {vr(T[b]+i,2)}, {vr(T[b]+i,2)}, {vr(U[b]+i,2)}")
        for b in range(2):
            a(f"v_cvt_pk_bf16_f32 v{G[0]+2*b}, v{T[b]}, v{T[b]+1}"); a(f"v_cvt_pk_bf16_f32 v{G[0]+2*b+1}, v{T[b]+2}, v{T[b]+3}")
        a.nop(1)
        a(f"v_permlane16_swap_b32 v{G[0]}, v{G[0]+2}"); a(f"v_permlane16_swap_b32 v{G[0]+1}, v{G[0]+3}")
        a(f"buffer_store_dwordx4 {vr(G[0],4)}, v4, s[24:27], 0 offen offset:{p*512}")
    a.lab("k1_end")
    if PFV in (4, 5):
        a("s_cmp_ge_u32 s2, 256"); a("s_cbranch_scc1 k1_end3")
        if PFV == 5: a("s_cmp_eq_u32 s67, 1"); a("s_cbranch_scc1 k1_end3")
        k3pf(a, 30, "e")
        a.lab("k1_end3")
    if STAMP:
        a("s_cmp_ge_u32 s2, 256"); a("s_cbranch_scc1 k1_end2")
        stamp(a, 6); a("s_waitcnt vmcnt(0)"); stamp(a, 7); a("s_mov_b64 s[92:93], s[94:95]"); stamp_out(a, 24, 9, 0)
        a.lab("k1_end2")
    a("s_endpgm")

def main():
    a = Asm()
    hdr = open(f"cdna_kernels/{NAME}.s.ref").read().split("; Override launch")[0]
    import gen3
    launches = ["; @launch kernel=k0_kernel grid=(512,1,1) block=(64,1,1) lds=0",
                f"; @launch kernel=k1_kernel grid=(256,1,1) block=(512,1,1) lds={K1_LDS}", gen3.LAUNCH]
    out = hdr + "\n".join(launches) + "\n" + '.amdgcn_target "amdgcn-amd-amdhsa--gfx950"\n.text\n'
    gen_k0(a); gen_k1(a); gen3.gen(a)
    out += "\n".join(a.l) + "\n" + '.section .rodata,"a"\n' + kdesc("k0_kernel", 136) + kdesc("k1_kernel", 256) + gen3.desc()
    dst = sys.argv[1] if len(sys.argv) > 1 else f"cdna_kernels/{NAME}.s"
    open(dst, "w").write(out)
if __name__ == "__main__": main()
```
